```python
import torch

def _softmax(x, axis=-1):
    return torch.softmax(x, dim=axis)
def _gelu(x):
    return torch.nn.functional.gelu(x, approximate="tanh")
def _silu(x):
    return torch.nn.functional.silu(x)
def _sigmoid(x):
    return torch.sigmoid(x)
def _layernorm(x, axis=-1, eps=1e-5):
    m = x.mean(dim=axis, keepdim=True)
    v = x.var(dim=axis, keepdim=True, unbiased=False)
    return (x - m) / torch.sqrt(v + eps)
def _scatter_add(tgt, idx, src, axis=0):
    return tgt.clone().index_add_(axis, idx, src)
def _segment_sum(src, seg, n):
    out = torch.zeros((n,) + src.shape[1:], dtype=src.dtype)
    return out.index_add_(0, seg, src)
def _pad(x, pw):
    flat = tuple(v for pair in reversed(pw) for v in pair)
    return torch.nn.functional.pad(x, flat)

kernel_name = 'standalone__linear_kernel_rfa__decode'

def setup_inputs():

    _w = (lambda a: (lambda t: t.to(torch.bfloat16) if t.is_floating_point() else t)(torch.as_tensor(a)))
    B, H, Sq, Sk, D, M = 1, 32, 1, 4096, 128, 64
    return {
        "q": _w((lambda *s: torch.randn(*s, dtype=torch.bfloat16) * 0.2)(B, H, Sq, D)),
        "k": _w((lambda *s: torch.randn(*s, dtype=torch.bfloat16) * 1.6)(B, H, Sk, D)),
        "v": _w((lambda *s: torch.randn(*s, dtype=torch.bfloat16) * 1.6)(B, H, Sk, D)),
        "omega": _w((lambda *s: torch.randn(*s, dtype=torch.bfloat16) * 1.6)(M, D)),
    }

def reference(q, k, v, omega):
    d = q.shape[-1]
    m = omega.shape[0]
    scale = float(d) ** -0.25
    qs = q * scale
    ks = k * scale
    q_proj = torch.einsum("bhsd,md->bhsm", qs, omega)
    k_proj = torch.einsum("bhsd,md->bhsm", ks, omega)
    q_sq = 0.5 * torch.einsum("bhsd,bhsd->bhs", qs, qs)[..., None]
    k_sq = 0.5 * torch.einsum("bhsd,bhsd->bhs", ks, ks)[..., None]
    inv_sqrt_m = float(m) ** -0.5
    phi_q = torch.exp(q_proj - q_sq) * inv_sqrt_m + 1e-6
    phi_k = torch.exp(k_proj - k_sq) * inv_sqrt_m + 1e-6
    kv = torch.einsum("bhsm,bhsd->bhmd", phi_k, v)
    z  = torch.einsum("bhsm->bhm", phi_k)
    num = torch.einsum("bhqm,bhmd->bhqd", phi_q, kv)
    den = torch.einsum("bhqm,bhm->bhq", phi_q, z)[..., None] + 1e-6
    return num / den
```

```python
import sys, struct

def f32bits(x):
    return struct.unpack("<I", struct.pack("<f", x))[0]

NAME = "standalone__linear_kernel_rfa__decode_kernel"

class Asm:
    def __init__(self):
        self.lines = []
    def __call__(self, s):
        self.lines.append("    " + s)
    def label(self, s):
        self.lines.append(s + ":")
    def c(self, s):
        self.lines.append("    ; " + s)
    def text(self):
        return "\n".join(self.lines) + "\n"

def vr(b, n): return f"v[{b}:{b+n-1}]"
def sr(b, n): return f"s[{b}:{b+n-1}]"

def gen(opts):
    POLK = opts.get("polk", "nt").replace("+", " ").replace("none", "")
    POLV = opts.get("polv", "nt").replace("+", " ").replace("none", "")
    MAP = opts.get("map", "hc")
    DIAG = opts.get("diag", False)
    PRIO = int(opts.get("prio", 0))
    a = Asm()

    LDS_OM, LDS_Q, LDS_K = 0, 16384, 20480
    LDS_X = LDS_K + 131072
    LDS_DEN = LDS_X + 2048
    LDS_RED = LDS_DEN + 256
    LDS_TOTAL = LDS_RED + 2048

    S_K, S_V, S_OM, S_Q, S_OUT, S_DBG, S_WS = 8, 12, 16, 20, 24, 28, 32
    s_head, s_chunk, s_wave = 36, 37, 38
    s_koff, s_t0, s_t1 = 39, 40, 41
    s_scale = 42
    s_log2e = 44
    s_mask = 46
    s_qoff = 47
    s_non = 48
    s_exec = 50
    s_cmp = 52
    s_wsoff = 54
    s_it = 55
    s_rowm = 56
    s_sel0, s_sel1 = 58, 59
    s_step = 60
    s_kl = 61
    NSGPR = 102 if DIAG else 64
    ST0 = 64
    stamp_n = [0]
    def stamp(idx=None):
        if DIAG:
            i = stamp_n[0] if idx is None else idx
            a(f"s_memrealtime s[{ST0+2*i}:{ST0+2*i+1}]")
            stamp_n[0] = i + 1
    def dump_stamps(n):
        if not DIAG: return
        a("s_waitcnt lgkmcnt(0)")
        a("v_mov_b32 v20, 0")
        for i in range(n):
            a(f"v_mov_b32 v21, s{ST0+2*i}")
            a(f"v_cmp_eq_u32 vcc, {i}, v1")
            a("s_nop 1")
            a("v_cndmask_b32 v20, v20, v21, vcc")
        a("s_lshl_b32 s100, s2, 4")
        a(f"s_add_u32 s100, s100, s{s_wave}")
        a("s_lshl_b32 s100, s100, 7")
        a("s_add_u32 s100, s100, 0x80000")
        a("v_lshlrev_b32 v21, 2, v1")
        a("v_cmp_gt_u32 vcc, 16, v1")
        a("s_and_saveexec_b64 s[98:99], vcc")
        a(f"buffer_store_dword v20, v21, {sr(S_WS,4)}, s100 offen")
        a("s_mov_b64 exec, s[98:99]")

    v_lane, v_n, v_g, v_u, v_t = 1, 2, 3, 4, 5
    NVGPR = 168

    a.label(NAME)
    a("s_cmp_ge_u32 s2, 256")
    a("s_cbranch_scc1 L_end")
    stamp(0)
    a(f"s_load_dwordx2 {sr(S_OM,2)}, s[0:1], 24")
    a(f"s_load_dwordx2 {sr(S_K,2)}, s[0:1], 8")
    a(f"s_load_dwordx2 {sr(S_Q,2)}, s[0:1], 0")
    a(f"s_load_dwordx2 {sr(S_V,2)}, s[0:1], 16")
    a(f"s_load_dwordx2 {sr(S_OUT,2)}, s[0:1], 32")
    a(f"s_load_dwordx2 {sr(S_DBG,2)}, s[0:1], 40")
    a(f"s_load_dwordx2 {sr(S_WS,2)}, s[0:1], 48")
    a(f"v_lshrrev_b32 v{v_t}, 6, v0")
    a(f"v_and_b32 v{v_lane}, 63, v0")
    a(f"v_readfirstlane_b32 s{s_wave}, v{v_t}")
    for s, n in ((S_K, 0x2000000), (S_V, 0x2000000), (S_OM, 16384), (S_Q, 8192), (S_OUT, 8192), (S_DBG, 256), (S_WS, 0x100000)):
        a(f"s_mov_b32 s{s+2}, 0x{n:x}")
        a(f"s_mov_b32 s{s+3}, 0x00020000")
    if MAP == "hc":
        a(f"s_and_b32 s{s_head}, s2, 31")
        a(f"s_lshr_b32 s{s_chunk}, s2, 5")
    else:
        a(f"s_lshr_b32 s{s_head}, s2, 3")
        a(f"s_and_b32 s{s_chunk}, s2, 7")
    a(f"v_and_b32 v{v_n}, 15, v0")
    a(f"v_lshrrev_b32 v{v_g}, 4, v{v_lane}")
    a(f"s_lshl_b32 s{s_koff}, s{s_head}, 20")
    a(f"s_lshl_b32 s{s_t0}, s{s_chunk}, 17")
    a(f"s_add_u32 s{s_koff}, s{s_koff}, s{s_t0}")
    a(f"s_lshl_b32 s{s_qoff}, s{s_head}, 8")
    a(f"s_mov_b32 s{s_mask}, 0xffff0000")
    a(f"s_cmp_ge_u32 s{s_wave}, 8")
    a("s_cbranch_scc1 L_vwave")

    v_dma = 6
    v_a = 10
    v_qd = 14
    v_nsq, v_sq = 16, 17
    v_X, v_X2 = 18, 19
    v_c3 = 20
    v_c0 = 24
    v_D = 28
    v_A = 32
    v_B = 96
    v_acc = 112
    v_pq = 128
    v_P = 136
    v_tmp = 144
    NT = 12
    a(f"v_xor_b32 v{v_u}, v{v_n}, v{v_g}")
    a(f"v_lshlrev_b32 v{v_u}, 4, v{v_u}")
    a(f"v_lshl_add_u32 v{v_dma}, v{v_g}, 8, v{v_u}")
    for jj in range(1, 4):
        a(f"v_xor_b32 v{v_dma+jj}, {64*jj}, v{v_dma}")
    a(f"s_lshl_b32 s{s_t0}, s{s_wave}, 14")
    a(f"s_add_u32 s{s_koff}, s{s_koff}, s{s_t0}")
    a(f"s_add_u32 s{s_kl}, s{s_t0}, {LDS_K}")
    a(f"s_lshl_b32 s{s_t1}, s{s_wave}, 6")
    a(f"v_xor_b32 v{v_qd}, s{s_t1}, v{v_u}")
    a(f"s_lshl_b32 s{s_t0}, s{s_wave}, 12")
    a(f"s_mov_b32 m0, s{s_t0}")
    if PRIO: a(f"s_setprio {PRIO}")
    def kdma():
        for T in range(4):
            a(f"s_add_u32 s{s_t1}, s{s_koff}, {4096*T}")
            a(f"s_add_u32 m0, s{s_kl}, {4096*T}")
            a("s_nop 0")
            for jj in range(4):
                a(f"buffer_load_dwordx4 v{v_dma+jj}, {sr(S_K,4)}, s{s_t1} offen offset:{1024*jj} {POLK} lds")
    a(f"s_cmp_ge_u32 s{s_wave}, 4")
    a("s_cbranch_scc1 L_k_late")
    a("s_waitcnt lgkmcnt(0)")
    stamp(1)
    for jj in range(4):
        a(f"buffer_load_dwordx4 v{v_dma+jj}, {sr(S_OM,4)}, s{s_t0} offen offset:{1024*jj} lds")
    a(f"s_lshl_b32 s{s_t0}, s{s_wave}, 10")
    a(f"s_add_u32 m0, s{s_t0}, {LDS_Q}")
    a("s_nop 0")
    a(f"buffer_load_dwordx4 v{v_qd}, {sr(S_Q,4)}, s{s_qoff} offen lds")
    kdma()
    stamp(2)
    a("s_waitcnt vmcnt(16)")
    a("s_barrier")
    a("s_branch L_k_go")
    a.label("L_k_late")
    a("s_waitcnt lgkmcnt(0)")
    stamp(1)
    a("s_barrier")
    kdma()
    stamp(2)
    a.label("L_k_go")
    stamp(3)
    if DIAG: a(f"s_memtime s[{ST0+14}:{ST0+15}]")
    a(f"v_lshl_add_u32 v{v_a}, v{v_n}, 8, v{v_u}")
    for t in range(1, 4):
        a(f"v_xor_b32 v{v_a+t}, {64*t}, v{v_a}")
    for mt in range(4):
        for t in range(4):
            a(f"ds_read_b128 {vr(v_A+16*mt+4*t,4)}, v{v_a+t} offset:{LDS_OM+4096*mt}")
    for t in range(4):
        a(f"v_add_u32 v{v_a+t}, {LDS_Q}, v{v_a+t}")
    sc = f32bits(float(128) ** -0.25)
    a(f"s_mov_b32 s{s_scale}, 0x{sc:08x}")
    a(f"s_mov_b32 s{s_scale+1}, 0x{sc:08x}")
    l2e = f32bits(1.4426950408889634)
    a(f"s_mov_b32 s{s_log2e}, 0x{l2e:08x}")
    a(f"s_mov_b32 s{s_log2e+1}, 0x{l2e:08x}")
    a(f"s_mov_b32 s{s_sel0}, 0x00003f80")
    a(f"s_mov_b32 s{s_sel1}, 0x3f800000")
    a(f"v_mov_b32 v{v_c3}, 0x{f32bits(-3.0):08x}")
    a(f"v_mov_b32 v{v_c3+1}, 0x{f32bits(-3.0):08x}")
    a(f"s_sub_u32 s{s_step}, s{s_kl}, {LDS_Q}")
    a(f"s_mov_b32 s{s_it}, 0")
    a(f"s_mov_b64 {sr(s_rowm,2)}, 0xffff")
    a(f"v_mov_b32 v{v_X}, 0")
    for i in range(4):
        a(f"v_mov_b32 v{v_c0+i}, 0")
    for i in range(8):
        a(f"v_mov_b32 v{v_pq+i}, 0")
    a("s_branch L_go")
    a.label("L_tile")
    a(f"s_cmp_ge_u32 s{s_it}, 3")
    a("s_cbranch_scc1 L_w34")
    a(f"s_cmp_eq_u32 s{s_it}, 1")
    a("s_cbranch_scc1 L_w1")
    a("s_waitcnt vmcnt(8)")
    a("s_branch L_go")
    a.label("L_w1")
    a("s_waitcnt vmcnt(12)")
    a("s_branch L_go")
    a.label("L_w34")
    a(f"s_cmp_eq_u32 s{s_it}, 3")
    a("s_cbranch_scc1 L_w3")
    a("s_waitcnt vmcnt(0)")
    a("s_branch L_go")
    a.label("L_w3")
    a("s_waitcnt vmcnt(4)")
    a.label("L_go")
    for t in range(4):
        a(f"ds_read_b128 {vr(v_B+4*t,4)}, v{v_a+t}")
    for t in range(4):
        a(f"v_add_u32 v{v_a+t}, s{s_step}, v{v_a+t}")
    a(f"s_movk_i32 s{s_step}, 4096")
    a("s_waitcnt lgkmcnt(0)")
    for i0 in range(0, 16, 4):
        idx = range(i0, i0 + 4)
        T = lambda i: v_tmp + 2 * (i % NT)
        for i in idx: a(f"v_lshlrev_b32 v{T(i)}, 16, v{v_B+i}")
        for i in idx: a(f"v_and_b32 v{T(i)+1}, s{s_mask}, v{v_B+i}")
        for i in idx: a(f"v_pk_mul_f32 {vr(T(i),2)}, {vr(T(i),2)}, {sr(s_scale,2)}")
        for i in idx: a(f"v_cvt_pk_bf16_f32 v{v_B+i}, v{T(i)}, v{T(i)+1}")
        for i in idx:
            if i == 0: a(f"v_dot2_f32_bf16 v{v_sq}, v{v_B+i}, v{v_B+i}, 0")
            else: a(f"v_dot2c_f32_bf16 v{v_sq}, v{v_B+i}, v{v_B+i}")
    def mf(t, mt):
        c = "0" if t == 0 else vr(v_acc+4*mt, 4)
        a(f"v_mfma_f32_16x16x32_bf16 {vr(v_acc+4*mt,4)}, {vr(v_A+16*mt+4*t,4)}, {vr(v_B+4*t,4)}, {c}")
    for mt in range(4): mf(0, mt)
    a(f"v_mov_b32 v{v_t}, v{v_sq}")
    mf(1, 0)
    mf(1, 1)
    a(f"v_permlane32_swap_b32 v{v_sq}, v{v_t}")
    mf(1, 2)
    a(f"v_add_f32 v{v_sq}, v{v_sq}, v{v_t}")
    mf(1, 3)
    a(f"v_mov_b32 v{v_t}, v{v_sq}")
    mf(2, 0)
    mf(2, 1)
    a(f"v_permlane16_swap_b32 v{v_sq}, v{v_t}")
    mf(2, 2)
    a(f"v_add_f32 v{v_sq}, v{v_sq}, v{v_t}")
    mf(2, 3)
    a(f"v_cvt_pk_bf16_f32 v{v_sq}, v{v_sq}, v{v_sq}")
    mf(3, 0)
    a(f"v_and_b32 v{v_sq}, s{s_mask}, v{v_sq}")
    mf(3, 1)
    a(f"v_mul_f32 v{v_nsq}, -0.5, v{v_sq}")
    mf(3, 2)
    mf(3, 3)
    a("s_nop 4")
    X0 = lambda p: v_acc + 2 * p
    for p in range(8): a(f"v_cvt_pk_bf16_f32 v{X0(p)}, v{X0(p)}, v{X0(p)+1}")
    for p in range(8): a(f"v_dot2_f32_bf16 v{X0(p)+1}, v{X0(p)}, s{s_sel1}, v{v_nsq}")
    for p in range(8): a(f"v_dot2_f32_bf16 v{X0(p)}, v{X0(p)}, s{s_sel0}, v{v_nsq}")
    for p in range(8): a(f"v_cvt_pk_bf16_f32 v{X0(p)}, v{X0(p)}, v{X0(p)+1}")
    for p in range(8):
        a(f"v_and_b32 v{X0(p)+1}, s{s_mask}, v{X0(p)}")
        a(f"v_lshlrev_b32 v{X0(p)}, 16, v{X0(p)}")
    for p in range(8): a(f"v_pk_fma_f32 {vr(X0(p),2)}, {vr(X0(p),2)}, {sr(s_log2e,2)}, {vr(v_c3,2)}")
    for p in range(8):
        a(f"v_exp_f32 v{X0(p)}, v{X0(p)}")
        a(f"v_exp_f32 v{X0(p)+1}, v{X0(p)+1}")
    for p in range(8): a(f"v_cvt_pk_bf16_f32 v{v_P+p}, v{X0(p)}, v{X0(p)+1}")
    a(f"s_cmp_eq_u32 s{s_it}, 0")
    a("s_cbranch_scc1 L_qfin")
    a("s_nop 0")
    a(f"v_mfma_f32_16x16x32_bf16 {vr(v_D,4)}, {vr(v_pq,4)}, {vr(v_P,4)}, {vr(v_c0,4)}")
    a(f"v_mfma_f32_16x16x32_bf16 {vr(v_D,4)}, {vr(v_pq+4,4)}, {vr(v_P+4,4)}, {vr(v_D,4)}")
    a(f"s_add_u32 s{s_it}, s{s_it}, 1")
    a("s_nop 6")
    a(f"v_cndmask_b32 v{v_X}, v{v_X}, v{v_D}, {sr(s_rowm,2)}")
    a(f"s_lshl_b64 {sr(s_rowm,2)}, {sr(s_rowm,2)}, 16")
    if DIAG:
        pass
    a(f"s_cmp_le_u32 s{s_it}, 4")
    a("s_cbranch_scc1 L_tile")
    a("s_branch L_kdone")
    a.label("L_qfin")
    a(f"v_mov_b32 v{v_tmp}, 0x{f32bits(1e-6):08x}")
    a(f"v_mov_b32 v{v_tmp+1}, 0x{f32bits(1e-6):08x}")
    for i in range(4): a(f"v_mov_b32 v{v_tmp+4+i}, 0x3f803f80")
    for p in range(8): a(f"v_pk_add_f32 {vr(X0(p),2)}, {vr(X0(p),2)}, {vr(v_tmp,2)}")
    for p in range(8): a(f"v_cvt_pk_bf16_f32 v{v_pq+p}, v{X0(p)}, v{X0(p)+1}")
    a("s_nop 1")
    a(f"v_mfma_f32_16x16x32_bf16 {vr(v_D,4)}, {vr(v_pq,4)}, {vr(v_tmp+4,4)}, 0")
    a(f"v_mfma_f32_16x16x32_bf16 {vr(v_D,4)}, {vr(v_pq+4,4)}, {vr(v_tmp+4,4)}, {vr(v_D,4)}")
    a(f"s_mov_b32 s{s_it}, 1")
    a("s_nop 6")
    for i in range(4): a(f"v_mul_f32 v{v_c0+i}, v{v_tmp}, v{v_D+i}")
    stamp(4)
    a("s_branch L_tile")
    a.label("L_kdone")
    stamp(5)
    if DIAG: a(f"s_memtime s[{ST0+16}:{ST0+17}]")
    a(f"v_cvt_pk_bf16_f32 v{v_t}, v{v_X}, v{v_X}")
    a(f"v_and_b32 v{v_t}, s{s_mask}, v{v_t}")
    a(f"v_sub_f32 v{v_X2}, v{v_X}, v{v_t}")
    a(f"v_cvt_pk_bf16_f32 v{v_X2}, v{v_X2}, v{v_t}")
    a(f"s_lshl_b32 s{s_t0}, s{s_wave}, 8")
    a(f"s_add_u32 s{s_t0}, s{s_t0}, {LDS_X}")
    a(f"v_lshlrev_b32 v{v_t}, 2, v{v_lane}")
    a(f"v_add_u32 v{v_t}, s{s_t0}, v{v_t}")
    a(f"ds_write_b32 v{v_t}, v{v_X2}")
    d = v_tmp
    a(f"v_add_f32_dpp v{d}, v{v_X}, v{v_X} quad_perm:[1,0,3,2] row_mask:0xf bank_mask:0xf")
    a("s_nop 1")
    a(f"v_add_f32_dpp v{d}, v{d}, v{d} quad_perm:[2,3,0,1] row_mask:0xf bank_mask:0xf")
    a("s_nop 1")
    a(f"v_add_f32_dpp v{d}, v{d}, v{d} row_half_mirror row_mask:0xf bank_mask:0xf")
    a("s_nop 1")
    a(f"v_add_f32_dpp v{d}, v{d}, v{d} row_mirror row_mask:0xf bank_mask:0xf")
    a(f"v_mov_b32 v{d+1}, v{d}")
    a("s_nop 1")
    a(f"v_permlane32_swap_b32 v{d}, v{d+1}")
    a("s_nop 0")
    a(f"v_add_f32 v{d}, v{d}, v{d+1}")
    a(f"v_mov_b32 v{d+1}, v{d}")
    a("s_nop 1")
    a(f"v_permlane16_swap_b32 v{d}, v{d+1}")
    a("s_nop 0")
    a(f"v_add_f32 v{d}, v{d}, v{d+1}")
    a(f"s_lshl_b32 s{s_t0}, s{s_wave}, 2")
    a(f"s_add_u32 s{s_t0}, s{s_t0}, {LDS_DEN}")
    a(f"v_mov_b32 v{d+1}, s{s_t0}")
    a(f"ds_write_b32 v{d+1}, v{d}")
    a("s_waitcnt lgkmcnt(0)")
    a("s_barrier")
    stamp(6)
    dump_stamps(9)
    a("s_endpgm")

    a.label("L_vwave")
    v_vo = 6
    v_sel = 8
    v_xa = 12
    v_wb = 14
    v_VA = 16
    v_VD = 24
    v_non = 28
    v_V = 32
    v_r = 160
    a(f"s_sub_u32 s{s_wave}, s{s_wave}, 8")
    a(f"s_lshl_b32 s{s_t0}, s{s_wave}, 15")
    a(f"s_add_u32 s{s_koff}, s{s_koff}, s{s_t0}")
    a(f"v_lshlrev_b32 v{v_vo}, 4, v{v_lane}")
    a(f"s_cmp_lg_u32 s{s_wave}, 0")
    a("s_cbranch_scc1 L_v_nononce")
    a(f"s_memrealtime {sr(s_non,2)}")
    a(f"v_mov_b32 v{v_non+2}, 0")
    a(f"v_mov_b32 v{v_non+3}, 0")
    a(f"s_lshl_b32 s{s_t0}, s{s_head}, 3")
    a(f"v_mov_b32 v{v_t}, s{s_t0}")
    a("s_waitcnt lgkmcnt(0)")
    a(f"s_or_b32 s{s_non}, s{s_non}, 1")
    a(f"v_mov_b32 v{v_non}, s{s_non}")
    a(f"v_mov_b32 v{v_non+1}, s{s_non+1}")
    a("s_mov_b64 exec, 1")
    a(f"buffer_atomic_cmpswap_x2 {vr(v_non,4)}, v{v_t}, {sr(S_DBG,4)}, 0 offen sc0")
    a("s_mov_b64 exec, -1")
    a.label("L_v_nononce")
    a("s_waitcnt lgkmcnt(0)")
    stamp(1)
    a("s_barrier")
    for j4 in range(8):
        a(f"s_add_u32 s{s_t1}, s{s_koff}, {4096*j4}")
        for jj in range(4):
            j = 4 * j4 + jj
            a(f"buffer_load_dwordx4 {vr(v_V+4*j,4)}, v{v_vo}, {sr(S_V,4)}, s{s_t1} offen offset:{1024*jj} {POLV}")
    stamp(2)
    t0, t1, t2 = v_r, v_r + 1, v_r + 2
    a(f"v_mov_b32 v{t0}, 0x0302")
    a(f"v_mov_b32 v{t1}, 0x0100")
    a(f"v_cmp_gt_u32 vcc, 8, v{v_n}")
    a("s_nop 1")
    a(f"v_cndmask_b32 v{t0}, v{t1}, v{t0}, vcc")
    a(f"v_lshlrev_b32 v{t1}, 16, v{t0}")
    a(f"v_or_b32 v{t1}, 0x0c0c, v{t1}")
    a(f"v_or_b32 v{t0}, 0x0c0c0000, v{t0}")
    a(f"v_and_b32 v{t2}, 1, v{v_n}")
    a(f"v_cmp_eq_u32 vcc, 1, v{t2}")
    a("s_nop 1")
    a(f"v_cndmask_b32 v{t0}, v{t0}, v{t1}, vcc")
    a(f"v_bfe_u32 v{t2}, v{v_n}, 1, 2")
    a(f"v_mov_b32 v{t1}, 0x0c0c0c0c")
    for k in range(4):
        a(f"v_cmp_eq_u32 vcc, {k}, v{t2}")
        a("s_nop 1")
        a(f"v_cndmask_b32 v{v_sel+k}, v{t1}, v{t0}, vcc")
    a(f"s_lshl_b32 s{s_t0}, s{s_wave}, 9")
    a(f"s_add_u32 s{s_t0}, s{s_t0}, {LDS_X}")
    a(f"v_lshl_add_u32 v{t2}, v{v_n}, 2, v{v_g}")
    a(f"v_lshlrev_b32 v{t2}, 2, v{t2}")
    a(f"v_add_u32 v{t2}, s{s_t0}, v{t2}")
    a(f"s_lshl_b32 s{s_t0}, s{s_wave}, 9")
    a(f"s_add_u32 s{s_t0}, s{s_t0}, {LDS_RED}")
    a(f"v_lshlrev_b32 v{v_t}, 3, v{v_lane}")
    a(f"v_add_u32 v{v_t}, s{s_t0}, v{v_t}")
    a("s_barrier")
    stamp(3)
    a(f"ds_read_b32 v{v_xa}, v{t2}")
    a(f"ds_read_b32 v{v_xa+1}, v{t2} offset:256")
    a("s_waitcnt lgkmcnt(0)")
    def buildA(j):
        wb = v_wb + (j % 2)
        A = v_VA + 4 * (j % 2)
        a(f"v_mov_b32_dpp v{wb}, v{v_xa + j // 16} row_newbcast:{j % 16} row_mask:0xf bank_mask:0xf")
        for k in range(4):
            a(f"v_perm_b32 v{A+k}, v{wb}, v{wb}, v{v_sel+k}")
    buildA(0)
    for j in range(32):
        if j + 1 < 32: buildA(j + 1)
        else: a("s_nop 1")
        a(f"s_waitcnt vmcnt({31-j})")
        c = "0" if j == 0 else vr(v_VD, 4)
        a(f"v_mfma_f32_16x16x32_bf16 {vr(v_VD,4)}, {vr(v_VA+4*(j%2),4)}, {vr(v_V+4*j,4)}, {c}")
    stamp(4)
    a("s_nop 7")
    a(f"v_permlane32_swap_b32 v{v_VD}, v{v_VD+2}")
    a(f"v_permlane32_swap_b32 v{v_VD+1}, v{v_VD+3}")
    a("s_nop 0")
    a(f"v_add_f32 v{v_VD}, v{v_VD}, v{v_VD+2}")
    a(f"v_add_f32 v{v_VD+1}, v{v_VD+1}, v{v_VD+3}")
    a(f"ds_write_b64 v{v_t}, {vr(v_VD,2)}")
    a("s_waitcnt lgkmcnt(0)")
    a("s_barrier")
    stamp(5)
    a(f"s_cmp_eq_u32 s{s_wave}, 0")
    a("s_cbranch_scc1 L_final")
    if DIAG:
        a(f"s_add_u32 s{s_wave}, s{s_wave}, 8")
        dump_stamps(6)
    a("s_endpgm")
    a.label("L_final")
    R = v_V
    for u in range(1, 4):
        a(f"ds_read_b64 {vr(R+2*u,2)}, v{v_t} offset:{512*u}")
    a(f"v_mov_b32 v{v_r}, {LDS_DEN}")
    a(f"ds_read_b128 {vr(R+8,4)}, v{v_r}")
    a(f"ds_read_b128 {vr(R+12,4)}, v{v_r} offset:16")
    N0, N1, DEN = v_VD, v_VD + 1, R + 8
    a(f"s_lshl_b32 s{s_wsoff}, s{s_head}, 14")
    a(f"v_lshlrev_b32 v{v_t}, 4, v{v_lane}")
    a(f"v_readfirstlane_b32 s{s_t0}, v{v_non}")
    a(f"v_readfirstlane_b32 s{s_t1}, v{v_non+1}")
    a("s_nop 3")
    a(f"s_or_b32 s{s_cmp}, s{s_t0}, s{s_t1}")
    a(f"s_cmp_eq_u32 s{s_cmp}, 0")
    a(f"s_cselect_b32 s{s_non}, s{s_non}, s{s_t0}")
    a(f"s_cselect_b32 s{s_non+1}, s{s_non+1}, s{s_t1}")
    a("s_waitcnt lgkmcnt(0)")
    for u in range(1, 4):
        a(f"v_add_f32 v{N0}, v{N0}, v{R+2*u}")
        a(f"v_add_f32 v{N1}, v{N1}, v{R+2*u+1}")
    for i in range(1, 8):
        a(f"v_add_f32 v{DEN}, v{DEN}, v{R+8+i}")
    a(f"s_cmp_eq_u32 s{s_chunk}, 0")
    a("s_cbranch_scc1 L_consumer")
    a(f"s_lshl_b32 s{s_t0}, s{s_chunk}, 11")
    a(f"s_add_u32 s{s_wsoff}, s{s_wsoff}, s{s_t0}")
    G = R + 16
    a(f"v_mov_b32 v{G}, v{N0}")
    a(f"v_mov_b32 v{G+1}, v{N1}")
    a(f"v_mov_b32 v{G+2}, s{s_non}")
    a(f"v_mov_b32 v{G+3}, s{s_non+1}")
    a(f"v_mov_b32 v{G+4}, v{DEN}")
    a(f"v_mov_b32 v{G+5}, v{DEN}")
    a(f"v_mov_b32 v{G+6}, s{s_non}")
    a(f"v_mov_b32 v{G+7}, s{s_non+1}")
    a(f"buffer_store_dwordx4 {vr(G,4)}, v{v_t}, {sr(S_WS,4)}, s{s_wsoff} offen sc1")
    a("s_mov_b64 exec, 1")
    a(f"buffer_store_dwordx4 {vr(G+4,4)}, v{v_t}, {sr(S_WS,4)}, s{s_wsoff} offen offset:1024 sc1")
    if DIAG:
        a("s_mov_b64 exec, -1")
        stamp(6)
        a(f"s_add_u32 s{s_wave}, s{s_wave}, 8")
        dump_stamps(7)
    a("s_endpgm")
    a.label("L_consumer")
    a(f"v_mov_b32 v{v_r}, 1024")
    Q = R + 32
    a.label("L_poll")
    for c in range(1, 8):
        a(f"s_add_u32 s{s_t0}, s{s_wsoff}, {2048*c}")
        a(f"buffer_load_dwordx4 {vr(Q+8*c,4)}, v{v_t}, {sr(S_WS,4)}, s{s_t0} offen sc1")
        a(f"buffer_load_dwordx4 {vr(Q+8*c+4,4)}, v{v_r}, {sr(S_WS,4)}, s{s_t0} offen sc1")
    a("s_waitcnt vmcnt(0)")
    a(f"v_mov_b32 v{v_r+1}, 0")
    for c in range(1, 8):
        for o in (2, 6):
            a(f"v_xor_b32 v{v_r+2}, s{s_non}, v{Q+8*c+o}")
            a(f"v_xor_b32 v{v_r+3}, s{s_non+1}, v{Q+8*c+o+1}")
            a(f"v_or3_b32 v{v_r+1}, v{v_r+1}, v{v_r+2}, v{v_r+3}")
    a(f"v_cmp_ne_u32 vcc, 0, v{v_r+1}")
    a("s_nop 4")
    a("s_cbranch_vccnz L_poll")
    for c in range(1, 8):
        a(f"v_add_f32 v{N0}, v{N0}, v{Q+8*c}")
        a(f"v_add_f32 v{N1}, v{N1}, v{Q+8*c+1}")
        a(f"v_add_f32 v{DEN}, v{DEN}, v{Q+8*c+4}")
    a(f"v_cvt_pk_bf16_f32 v{v_r}, v{N0}, v{N1}")
    a(f"v_lshlrev_b32 v{N0}, 16, v{v_r}")
    a(f"v_and_b32 v{N1}, s{s_mask}, v{v_r}")
    a(f"v_cvt_pk_bf16_f32 v{DEN}, v{DEN}, v{DEN}")
    a(f"v_and_b32 v{DEN}, s{s_mask}, v{DEN}")
    a(f"v_add_f32 v{DEN}, 0x{f32bits(1e-6):08x}, v{DEN}")
    a(f"v_cvt_pk_bf16_f32 v{DEN}, v{DEN}, v{DEN}")
    a(f"v_and_b32 v{DEN}, s{s_mask}, v{DEN}")
    a(f"v_rcp_f32 v{DEN}, v{DEN}")
    a("s_nop 0")
    a(f"v_mul_f32 v{N0}, v{N0}, v{DEN}")
    a(f"v_mul_f32 v{N1}, v{N1}, v{DEN}")
    a(f"v_cvt_pk_bf16_f32 v{v_r}, v{N0}, v{N1}")
    a(f"v_and_b32 v{v_t}, 1, v{v_g}")
    a(f"v_lshlrev_b32 v{v_t}, 1, v{v_t}")
    a(f"v_lshrrev_b32 v{v_r+1}, 1, v{v_g}")
    a(f"v_add_u32 v{v_t}, v{v_t}, v{v_r+1}")
    a(f"v_lshl_add_u32 v{v_t}, v{v_n}, 2, v{v_t}")
    a(f"v_lshlrev_b32 v{v_t}, 2, v{v_t}")
    a(f"buffer_store_dword v{v_r}, v{v_t}, {sr(S_OUT,4)}, s{s_qoff} offen {opts.get('outpol','').replace('+',' ')}")
    if opts.get("probe"):
        a("s_memrealtime s[56:57]")
        a("s_waitcnt lgkmcnt(0)")
        a(f"s_sub_u32 s58, s56, s{s_non}")
        a("s_lshl_b32 s58, s58, 2")
        a("s_add_u32 s58, s58, s56")
        a.label("L_spin")
        a("s_sleep 8")
        a("s_memrealtime s[56:57]")
        a("s_waitcnt lgkmcnt(0)")
        a("s_sub_u32 s59, s56, s58")
        a("s_cmp_lt_i32 s59, 0")
        a("s_cbranch_scc1 L_spin")
    if opts.get("dbgspan"):
        a("s_memrealtime s[56:57]")
        a(f"s_lshl_b32 s{s_t0}, s{s_head}, 3")
        a(f"s_add_u32 s{s_t0}, s{s_t0}, 4")
        a("s_waitcnt lgkmcnt(0)")
        a("v_mov_b32 v20, s56")
        a(f"v_mov_b32 v21, s{s_t0}")
        a("s_mov_b64 exec, 1")
        a(f"buffer_store_dword v20, v21, {sr(S_DBG,4)}, 0 offen")
    if DIAG:
        stamp(6)
        a(f"s_add_u32 s{s_wave}, s{s_wave}, 8")
        dump_stamps(7)
    a.label("L_end")
    a("s_endpgm")
    return finish(a, LDS_TOTAL, NVGPR, NSGPR, 768)

def finish(a, LDS_TOTAL, NVGPR, NSGPR, BLOCK):
    ref = open("standalone__linear_kernel_rfa__decode.s.ref").read().splitlines()
    stop = next(i for i, l in enumerate(ref) if not l.startswith(";"))
    head = [l for l in ref[:stop] if "@launch" not in l and "Override" not in l and "grid=ceil" not in l]
    out = "\n".join(head) + f"\n; @launch grid=(256,1,1) block=({BLOCK},1,1) lds={LDS_TOTAL}\n"
    out += '.amdgcn_target "amdgcn-amd-amdhsa--gfx950"\n.text\n'
    out += f".globl {NAME}\n.p2align 8\n.type {NAME},@function\n"
    out += a.text()
    out += f""".section .rodata,"a"
.p2align 6
.amdhsa_kernel {NAME}
  .amdhsa_next_free_vgpr {NVGPR}
  .amdhsa_next_free_sgpr {NSGPR}
  .amdhsa_accum_offset {NVGPR}
  .amdhsa_group_segment_fixed_size 0
  .amdhsa_kernarg_size 56
  .amdhsa_user_sgpr_count 2
  .amdhsa_user_sgpr_kernarg_segment_ptr 1
  .amdhsa_system_sgpr_workgroup_id_x 1
.end_amdhsa_kernel
"""
    return out

if __name__ == "__main__":
    opts = {}
    outp = None
    for arg in sys.argv[1:]:
        if "=" in arg:
            k, v = arg.split("=", 1)
            if v in ("0", "1") and k in ("diag",): v = bool(int(v))
            opts[k] = v
        else:
            outp = arg
    txt = gen(opts)
    if outp: open(outp, "w").write(txt)
    else: sys.stdout.write(txt)
```

```python
import sys, struct
from gen2 import Asm, vr, sr, f32bits, finish, NAME

def gen(opts):
    POLK = opts.get("polk", "nt").replace("+", " ").replace("none", "")
    POLV = opts.get("polv", "nt").replace("+", " ").replace("none", "")
    MAP = opts.get("map", "hc2")
    DIAG = opts.get("diag", False)
    PRIO = int(opts.get("prio", 0))
    AHEAD = int(opts.get("ahead", 1))
    VPRIO = int(opts.get("vprio", 3))
    REST = int(opts.get("rest", 1))
    CONS = int(opts.get("cons", 0))
    DUAL = int(opts.get("dual", 1))
    DRY = int(opts.get("dry", 0))
    PUBPOL = opts.get("pubpol", "sc1").replace("+", " ").replace("none", "")
    POLLPOL = opts.get("pollpol", "sc1").replace("+", " ").replace("none", "")
    EARLY = int(opts.get("early", 0))
    assert EARLY % 4 == 0 and EARLY <= 12
    a = Asm()

    LDS_OM, LDS_K = 0, 16384
    LDS_X = LDS_K + 131072
    LDS_DEN = LDS_X + 2048
    LDS_FLAG = LDS_DEN + 32
    LDS_PQ = LDS_DEN + 64
    LDS_RED = LDS_DEN + 256
    LDS_Q = LDS_RED + 2048
    LDS_G = LDS_Q + 1024
    LDS_NON = LDS_DEN + 48
    LDS_RDEN = LDS_DEN + 56
    LDS_TOTAL = LDS_G + 4096
    WS_A, WS_B, WS_DEN = 0, 0x100000, 0x80000

    S_K, S_V, S_OM, S_Q, S_OUT, S_DBG, S_WS = 8, 12, 16, 20, 24, 28, 32
    s_head, s_chunk, s_wave = 36, 37, 38
    s_koff, s_t0, s_t1 = 39, 40, 41
    s_scale = 42; s_log2e = 44; s_mask = 46; s_qoff = 47
    s_non = 48; s_exec = 50; s_cmp = 52; s_wsoff = 54; s_it = 55; s_rowm = 56
    s_sel0, s_sel1 = 58, 59
    s_kl = 61; s_knext = 62; s_lnext = 63
    NSGPR = 102 if DIAG else 64
    ST0 = 64
    def stamp(i):
        if DIAG: a(f"s_memrealtime s[{ST0+2*i}:{ST0+2*i+1}]")
    def dump_stamps(n):
        if not DIAG: return
        a("s_waitcnt lgkmcnt(0)")
        a("v_mov_b32 v20, 0")
        for i in range(n):
            a(f"v_mov_b32 v21, s{ST0+2*i}")
            a(f"v_cmp_eq_u32 vcc, {i}, v1")
            a("s_nop 1")
            a("v_cndmask_b32 v20, v20, v21, vcc")
        a("s_lshl_b32 s100, s2, 4")
        a(f"s_add_u32 s100, s100, s{s_wave}")
        a("s_lshl_b32 s100, s100, 7")
        a("s_add_u32 s100, s100, 0x400000")
        a("v_lshlrev_b32 v21, 2, v1")
        a("v_cmp_gt_u32 vcc, 16, v1")
        a("s_and_saveexec_b64 s[98:99], vcc")
        a(f"buffer_store_dword v20, v21, {sr(S_WS,4)}, s100 offen")
        a("s_mov_b64 exec, s[98:99]")

    v_lane, v_n, v_g, v_u, v_t = 1, 2, 3, 4, 5
    NVGPR = 168
    sc = f32bits(float(128) ** -0.25)
    l2e = f32bits(1.4426950408889634)

    def consts():
        a(f"s_mov_b32 s{s_scale}, 0x{sc:08x}")
        a(f"s_mov_b32 s{s_scale+1}, 0x{sc:08x}")
        a(f"s_mov_b32 s{s_log2e}, 0x{l2e:08x}")
        a(f"s_mov_b32 s{s_log2e+1}, 0x{l2e:08x}")
        a(f"s_mov_b32 s{s_sel0}, 0x00003f80")
        a(f"s_mov_b32 s{s_sel1}, 0x3f800000")

    def prep(B, tmp, NT, sq):
        for i0 in range(0, 16, 4):
            idx = range(i0, i0 + 4)
            T = lambda i: tmp + 2 * (i % NT)
            for i in idx: a(f"v_lshlrev_b32 v{T(i)}, 16, v{B+i}")
            for i in idx: a(f"v_and_b32 v{T(i)+1}, s{s_mask}, v{B+i}")
            for i in idx: a(f"v_pk_mul_f32 {vr(T(i),2)}, {vr(T(i),2)}, {sr(s_scale,2)}")
            for i in idx: a(f"v_cvt_pk_bf16_f32 v{B+i}, v{T(i)}, v{T(i)+1}")
            for i in idx:
                if i == 0: a(f"v_dot2_f32_bf16 v{sq}, v{B+i}, v{B+i}, 0")
                else: a(f"v_dot2c_f32_bf16 v{sq}, v{B+i}, v{B+i}")

    def expstages(X0, npairs, nsq, c3):
        for p in range(npairs): a(f"v_cvt_pk_bf16_f32 v{X0(p)}, v{X0(p)}, v{X0(p)+1}")
        if npairs < 4: a("s_nop 1")
        for p in range(npairs): a(f"v_dot2_f32_bf16 v{X0(p)+1}, v{X0(p)}, s{s_sel1}, v{nsq}")
        for p in range(npairs): a(f"v_dot2_f32_bf16 v{X0(p)}, v{X0(p)}, s{s_sel0}, v{nsq}")
        if npairs < 4: a("s_nop 3")
        for p in range(npairs): a(f"v_cvt_pk_bf16_f32 v{X0(p)}, v{X0(p)}, v{X0(p)+1}")
        for p in range(npairs):
            a(f"v_and_b32 v{X0(p)+1}, s{s_mask}, v{X0(p)}")
            a(f"v_lshlrev_b32 v{X0(p)}, 16, v{X0(p)}")
        for p in range(npairs): a(f"v_pk_fma_f32 {vr(X0(p),2)}, {vr(X0(p),2)}, {sr(s_log2e,2)}, {vr(c3,2)}")
        for p in range(npairs):
            a(f"v_exp_f32 v{X0(p)}, v{X0(p)}")
            a(f"v_exp_f32 v{X0(p)+1}, v{X0(p)+1}")

    a.label(NAME)
    a("s_cmp_ge_u32 s2, 256")
    a("s_cbranch_scc1 L_end")
    stamp(0)
    a(f"s_load_dwordx2 {sr(S_OM,2)}, s[0:1], 24")
    a(f"s_load_dwordx2 {sr(S_K,2)}, s[0:1], 8")
    a(f"s_load_dwordx2 {sr(S_Q,2)}, s[0:1], 0")
    a(f"s_load_dwordx2 {sr(S_V,2)}, s[0:1], 16")
    a(f"s_load_dwordx2 {sr(S_OUT,2)}, s[0:1], 32")
    a(f"s_load_dwordx2 {sr(S_DBG,2)}, s[0:1], 40")
    a(f"s_load_dwordx2 {sr(S_WS,2)}, s[0:1], 48")
    a(f"v_lshrrev_b32 v{v_t}, 6, v0")
    a(f"v_and_b32 v{v_lane}, 63, v0")
    a(f"v_readfirstlane_b32 s{s_wave}, v{v_t}")
    for s, n in ((S_K, 0x2000000), (S_V, 0x2000000), (S_OM, 16384), (S_Q, 8192), (S_OUT, 8192), (S_DBG, 256), (S_WS, 0x800000)):
        a(f"s_mov_b32 s{s+2}, 0x{n:x}")
        a(f"s_mov_b32 s{s+3}, 0x00020000")
    if MAP == "hc":
        a(f"s_and_b32 s{s_head}, s2, 31")
        a(f"s_lshr_b32 s{s_chunk}, s2, 5")
    elif MAP == "hc2":
        a(f"s_and_b32 s{s_head}, s2, 7")
        a(f"s_lshl_b32 s{s_head}, s{s_head}, 2")
        a(f"s_lshr_b32 s{s_t0}, s2, 3")
        a(f"s_and_b32 s{s_t0}, s{s_t0}, 3")
        a(f"s_add_u32 s{s_head}, s{s_head}, s{s_t0}")
        a(f"s_lshr_b32 s{s_chunk}, s2, 5")
    else:
        a(f"s_lshr_b32 s{s_head}, s2, 3")
        a(f"s_and_b32 s{s_chunk}, s2, 7")
    a(f"v_and_b32 v{v_n}, 15, v0")
    a(f"v_lshrrev_b32 v{v_g}, 4, v{v_lane}")
    a(f"s_lshl_b32 s{s_koff}, s{s_head}, 20")
    a(f"s_lshl_b32 s{s_t0}, s{s_chunk}, 17")
    a(f"s_add_u32 s{s_koff}, s{s_koff}, s{s_t0}")
    a(f"s_lshl_b32 s{s_qoff}, s{s_head}, 8")
    a(f"s_mov_b32 s{s_mask}, 0xffff0000")
    a(f"v_xor_b32 v{v_u}, v{v_n}, v{v_g}")
    a(f"v_lshlrev_b32 v{v_u}, 4, v{v_u}")
    a(f"s_cmp_ge_u32 s{s_wave}, 8")
    a("s_cbranch_scc1 L_vwave")

    v_dma = 6; v_a = 10; v_om0, v_om1 = 14, 15
    v_nsq, v_sq = 16, 17
    v_X, v_X2 = 18, 19
    v_c3 = 20; v_c0 = 24; v_D = 28
    v_A = 32; v_B = 96; v_acc = 112; v_pq = 128; v_P = 136; v_tmp = 144; NT = 12
    a(f"v_lshl_add_u32 v{v_dma}, v{v_g}, 8, v{v_u}")
    for jj in range(1, 4):
        a(f"v_xor_b32 v{v_dma+jj}, {64*jj}, v{v_dma}")
    a(f"s_lshl_b32 s{s_t0}, s{s_wave}, 14")
    a(f"s_add_u32 s{s_knext}, s{s_koff}, s{s_t0}")
    a(f"s_add_u32 s{s_kl}, s{s_t0}, {LDS_K}")
    a(f"s_mov_b32 s{s_lnext}, s{s_kl}")
    a(f"s_lshl_b32 s{s_t0}, s{s_wave}, 12")
    a(f"s_mov_b32 m0, s{s_t0}")
    if PRIO: a(f"s_setprio {PRIO}")
    def ktile():
        a(f"s_mov_b32 m0, s{s_lnext}")
        a(f"s_add_u32 s{s_lnext}, s{s_lnext}, 4096")
        for jj in range(4):
            a(f"buffer_load_dwordx4 v{v_dma+jj}, {sr(S_K,4)}, s{s_knext} offen offset:{1024*jj} {POLK} lds")
        a(f"s_add_u32 s{s_knext}, s{s_knext}, 4096")
    a("s_waitcnt lgkmcnt(0)")
    stamp(1)
    a(f"s_cmp_ge_u32 s{s_wave}, 4")
    a("s_cbranch_scc1 L_k_noom")
    for jj in range(4):
        a(f"buffer_load_dwordx4 v{v_dma+jj}, {sr(S_OM,4)}, s{s_t0} offen offset:{1024*jj} lds")
    a(f"s_cmp_lg_u32 s{s_wave}, 0")
    a("s_cbranch_scc1 L_k_noom")
    a(f"s_mov_b32 m0, {LDS_Q}")
    a(f"v_lshlrev_b32 v{v_t}, 4, v{v_lane}")
    a(f"buffer_load_dwordx4 v{v_t}, {sr(S_Q,4)}, s{s_qoff} offen lds")
    a.label("L_k_noom")
    for T in range(AHEAD): ktile()
    stamp(2)
    a(f"v_lshl_add_u32 v{v_a}, v{v_n}, 8, v{v_u}")
    for t in range(1, 4):
        a(f"v_xor_b32 v{v_a+t}, {64*t}, v{v_a}")
    consts()
    a(f"v_mov_b32 v{v_c3}, 0x{f32bits(-3.0):08x}")
    a(f"v_mov_b32 v{v_c3+1}, 0x{f32bits(-3.0):08x}")
    a(f"s_mov_b32 s{s_it}, 0")
    a(f"s_mov_b64 {sr(s_rowm,2)}, 0xffff")
    a(f"v_mov_b32 v{v_X}, 0")
    a(f"s_waitcnt vmcnt({4*AHEAD})")
    a("s_barrier")
    stamp(3)
    for mt in range(4):
        for t in range(4):
            a(f"ds_read_b128 {vr(v_A+16*mt+4*t,4)}, v{v_a+t} offset:{LDS_OM+4096*mt}")
    for t in range(4):
        a(f"v_add_u32 v{v_a+t}, s{s_kl}, v{v_a+t}")
    if REST:
        for T in range(4 - AHEAD): ktile()
    a.label("L_tile")
    if REST:
        a(f"s_cmp_ge_u32 s{s_it}, 2")
        a("s_cbranch_scc1 L_w23")
        a(f"s_cmp_eq_u32 s{s_it}, 1")
        a("s_cbranch_scc1 L_w1")
        a("s_waitcnt vmcnt(12)")
        a("s_branch L_go")
        a.label("L_w1")
        a("s_waitcnt vmcnt(8)")
        a("s_branch L_go")
        a.label("L_w23")
        a(f"s_cmp_eq_u32 s{s_it}, 3")
        a("s_cbranch_scc1 L_w0")
        a("s_waitcnt vmcnt(4)")
        a("s_branch L_go")
        a.label("L_w0")
        a("s_waitcnt vmcnt(0)")
        a.label("L_go")
    elif AHEAD == 2:
        a(f"s_cmp_eq_u32 s{s_it}, 3")
        a("s_cbranch_scc1 L_w0")
        a("s_waitcnt vmcnt(4)")
        a("s_branch L_go")
        a.label("L_w0")
        a("s_waitcnt vmcnt(0)")
        a.label("L_go")
    elif AHEAD == 3:
        a(f"s_cmp_ge_u32 s{s_it}, 2")
        a("s_cbranch_scc1 L_w23")
        a("s_waitcnt vmcnt(8)")
        a("s_branch L_go")
        a.label("L_w23")
        a(f"s_cmp_eq_u32 s{s_it}, 3")
        a("s_cbranch_scc1 L_w0")
        a("s_waitcnt vmcnt(4)")
        a("s_branch L_go")
        a.label("L_w0")
        a("s_waitcnt vmcnt(0)")
        a.label("L_go")
    for t in range(4):
        a(f"ds_read_b128 {vr(v_B+4*t,4)}, v{v_a+t}")
    for t in range(4):
        a(f"v_add_u32 v{v_a+t}, 4096, v{v_a+t}")
    if not REST:
        a(f"s_cmp_ge_u32 s{s_it}, {4-AHEAD}")
        a("s_cbranch_scc1 L_noissue")
        ktile()
        a.label("L_noissue")
    a("s_waitcnt lgkmcnt(0)")
    prep(v_B, v_tmp, NT, v_sq)
    def mf(t, mt):
        c = "0" if t == 0 else vr(v_acc+4*mt, 4)
        a(f"v_mfma_f32_16x16x32_bf16 {vr(v_acc+4*mt,4)}, {vr(v_A+16*mt+4*t,4)}, {vr(v_B+4*t,4)}, {c}")
    for mt in range(4): mf(0, mt)
    a(f"v_mov_b32 v{v_t}, v{v_sq}")
    mf(1, 0); mf(1, 1)
    a(f"v_permlane32_swap_b32 v{v_sq}, v{v_t}")
    mf(1, 2)
    a(f"v_add_f32 v{v_sq}, v{v_sq}, v{v_t}")
    mf(1, 3)
    a(f"v_mov_b32 v{v_t}, v{v_sq}")
    mf(2, 0); mf(2, 1)
    a(f"v_permlane16_swap_b32 v{v_sq}, v{v_t}")
    mf(2, 2)
    a(f"v_add_f32 v{v_sq}, v{v_sq}, v{v_t}")
    mf(2, 3)
    a(f"v_cvt_pk_bf16_f32 v{v_sq}, v{v_sq}, v{v_sq}")
    mf(3, 0)
    a(f"v_and_b32 v{v_sq}, s{s_mask}, v{v_sq}")
    mf(3, 1)
    a(f"v_mul_f32 v{v_nsq}, -0.5, v{v_sq}")
    mf(3, 2); mf(3, 3)
    a("s_nop 4")
    X0 = lambda p: v_acc + 2 * p
    expstages(X0, 8, v_nsq, v_c3)
    for p in range(8): a(f"v_cvt_pk_bf16_f32 v{v_P+p}, v{X0(p)}, v{X0(p)+1}")
    a(f"s_cmp_lg_u32 s{s_it}, 0")
    a("s_cbranch_scc1 L_havepq")
    a(f"v_mov_b32 v{v_tmp}, {LDS_FLAG}")
    a.label("L_pqwait")
    a(f"ds_read_b32 v{v_tmp+1}, v{v_tmp}")
    a("s_waitcnt lgkmcnt(0)")
    a(f"v_readfirstlane_b32 s{s_t0}, v{v_tmp+1}")
    a("s_nop 3")
    a(f"s_cmp_lt_u32 s{s_t0}, 4")
    a("s_cbranch_scc1 L_pqwait")
    a(f"v_lshlrev_b32 v{v_tmp}, 5, v{v_g}")
    a(f"v_add_u32 v{v_tmp}, {LDS_PQ}, v{v_tmp}")
    a(f"ds_read_b128 {vr(v_pq,4)}, v{v_tmp}")
    a(f"ds_read_b128 {vr(v_pq+4,4)}, v{v_tmp} offset:16")
    for i in range(4): a(f"v_mov_b32 v{v_tmp+4+i}, 0x3f803f80")
    a(f"v_mov_b32 v{v_tmp}, 0x{f32bits(1e-6):08x}")
    a("s_waitcnt lgkmcnt(0)")
    a(f"v_mfma_f32_16x16x32_bf16 {vr(v_D,4)}, {vr(v_pq,4)}, {vr(v_tmp+4,4)}, 0")
    a(f"v_mfma_f32_16x16x32_bf16 {vr(v_D,4)}, {vr(v_pq+4,4)}, {vr(v_tmp+4,4)}, {vr(v_D,4)}")
    a("s_nop 7")
    for i in range(4): a(f"v_mul_f32 v{v_c0+i}, v{v_tmp}, v{v_D+i}")
    stamp(4)
    a("s_nop 1")
    a.label("L_havepq")
    a(f"v_mfma_f32_16x16x32_bf16 {vr(v_D,4)}, {vr(v_pq,4)}, {vr(v_P,4)}, {vr(v_c0,4)}")
    a(f"v_mfma_f32_16x16x32_bf16 {vr(v_D,4)}, {vr(v_pq+4,4)}, {vr(v_P+4,4)}, {vr(v_D,4)}")
    a(f"s_add_u32 s{s_it}, s{s_it}, 1")
    a("s_nop 6")
    a(f"v_cndmask_b32 v{v_X}, v{v_X}, v{v_D}, {sr(s_rowm,2)}")
    a(f"s_lshl_b64 {sr(s_rowm,2)}, {sr(s_rowm,2)}, 16")
    a(f"s_cmp_lt_u32 s{s_it}, 4")
    a("s_cbranch_scc1 L_tile")
    stamp(5)
    a(f"v_cvt_pk_bf16_f32 v{v_t}, v{v_X}, v{v_X}")
    a(f"s_lshl_b32 s{s_t0}, s{s_wave}, 8")
    a(f"v_and_b32 v{v_t}, s{s_mask}, v{v_t}")
    a(f"s_add_u32 s{s_t0}, s{s_t0}, {LDS_X}")
    a(f"v_sub_f32 v{v_X2}, v{v_X}, v{v_t}")
    a(f"v_lshlrev_b32 v{v_tmp}, 2, v{v_lane}")
    a(f"v_cvt_pk_bf16_f32 v{v_X2}, v{v_X2}, v{v_t}")
    a(f"v_add_u32 v{v_tmp}, s{s_t0}, v{v_tmp}")
    a(f"ds_write_b32 v{v_tmp}, v{v_X2}")
    d = v_tmp + 2
    a(f"v_add_f32_dpp v{d}, v{v_X}, v{v_X} quad_perm:[1,0,3,2] row_mask:0xf bank_mask:0xf")
    a("s_nop 1")
    a(f"v_add_f32_dpp v{d}, v{d}, v{d} quad_perm:[2,3,0,1] row_mask:0xf bank_mask:0xf")
    a("s_nop 1")
    a(f"v_add_f32_dpp v{d}, v{d}, v{d} row_half_mirror row_mask:0xf bank_mask:0xf")
    a("s_nop 1")
    a(f"v_add_f32_dpp v{d}, v{d}, v{d} row_mirror row_mask:0xf bank_mask:0xf")
    a(f"v_mov_b32 v{d+1}, v{d}")
    a("s_nop 1")
    a(f"v_permlane32_swap_b32 v{d}, v{d+1}")
    a("s_nop 0")
    a(f"v_add_f32 v{d}, v{d}, v{d+1}")
    a(f"v_mov_b32 v{d+1}, v{d}")
    a("s_nop 1")
    a(f"v_permlane16_swap_b32 v{d}, v{d+1}")
    a("s_nop 0")
    a(f"v_add_f32 v{d}, v{d}, v{d+1}")
    a(f"s_lshl_b32 s{s_t0}, s{s_wave}, 2")
    a(f"s_add_u32 s{s_t0}, s{s_t0}, {LDS_DEN}")
    a(f"v_mov_b32 v{d+1}, s{s_t0}")
    a("s_mov_b64 exec, 1")
    a(f"ds_write_b32 v{d+1}, v{d}")
    a("s_mov_b64 exec, -1")
    a("s_waitcnt lgkmcnt(0)")
    a("s_barrier")
    stamp(6)
    a(f"v_mov_b32 v{d}, {LDS_NON}")
    a(f"v_mov_b32 v{d+1}, {LDS_DEN}")
    a(f"ds_read_b64 {vr(d+2,2)}, v{d}")
    a(f"ds_read_b128 {vr(32,4)}, v{d+1}")
    a(f"ds_read_b128 {vr(36,4)}, v{d+1} offset:16")
    a(f"s_cmp_eq_u32 s{s_chunk}, {CONS}")
    a("s_cbranch_scc1 L_k_cons")
    a(f"s_cmp_lg_u32 s{s_wave}, 0")
    a("s_cbranch_scc1 L_k_exit")
    a(f"s_lshl_b32 s{s_t0}, s{s_head}, 7")
    a(f"s_lshl_b32 s{s_t1}, s{s_chunk}, 4")
    a(f"s_add_u32 s{s_t0}, s{s_t0}, s{s_t1}")
    a(f"s_add_u32 s{s_t0}, s{s_t0}, {WS_DEN}")
    a(f"v_mov_b32 v{v_t}, 0")
    a("s_waitcnt lgkmcnt(0)")
    for i in range(1, 8): a(f"v_add_f32 v32, v32, v{32+i}")
    a(f"v_mov_b32 v33, 0")
    a(f"v_mov_b32 v34, v{d+2}")
    a(f"v_mov_b32 v35, v{d+3}")
    a("s_mov_b64 exec, 1")
    if DUAL: a(f"buffer_store_dwordx4 v[32:35], v{v_t}, {sr(S_WS,4)}, s{s_t0} offen offset:0")
    a(f"s_add_u32 s{s_t0}, s{s_t0}, {WS_B}")
    a(f"buffer_store_dwordx4 v[32:35], v{v_t}, {sr(S_WS,4)}, s{s_t0} offen sc1")
    a("s_mov_b64 exec, -1")
    a.label("L_k_exit")
    dump_stamps(7)
    a("s_endpgm")
    a.label("L_k_cons")
    a("s_waitcnt lgkmcnt(0)")
    a(f"v_readfirstlane_b32 s{s_non}, v{d+2}")
    a(f"v_readfirstlane_b32 s{s_non+1}, v{d+3}")
    a(f"s_cmp_eq_u32 s{s_wave}, 7")
    a("s_cbranch_scc1 L_k_den")
    a(f"s_cmp_ge_u32 s{s_wave}, {CONS}")
    a(f"s_cselect_b32 s{s_t0}, 1, 0")
    a(f"s_add_u32 s{s_t0}, s{s_t0}, s{s_wave}")
    a(f"s_lshl_b32 s{s_t0}, s{s_t0}, 10")
    a(f"s_lshl_b32 s{s_wsoff}, s{s_head}, 13")
    a(f"s_add_u32 s{s_wsoff}, s{s_wsoff}, s{s_t0}")
    a(f"s_add_u32 s{s_t1}, s{s_wsoff}, {WS_B}")
    a(f"v_lshlrev_b32 v{v_t}, 4, v{v_lane}")
    a(f"s_lshl_b32 s{s_t0}, s{s_wave}, 9")
    a(f"s_add_u32 s{s_t0}, s{s_t0}, {LDS_G}")
    a(f"v_lshlrev_b32 v{d}, 3, v{v_lane}")
    a(f"v_add_u32 v{d}, s{s_t0}, v{d}")
    a.label("L_gloop")
    if DUAL: a(f"buffer_load_dwordx4 v[40:43], v{v_t}, {sr(S_WS,4)}, s{s_wsoff} offen sc1")
    a(f"buffer_load_dwordx4 v[44:47], v{v_t}, {sr(S_WS,4)}, s{s_t1} offen sc1")
    if DUAL:
        a("s_waitcnt vmcnt(1)")
        a(f"v_xor_b32 v48, s{s_non}, v42")
        a(f"v_xor_b32 v49, s{s_non+1}, v43")
        a("v_or_b32 v48, v48, v49")
        a("v_cmp_ne_u32 vcc, 0, v48")
        a("s_nop 4")
        a("s_cbranch_vccz L_gokA")
    a("s_waitcnt vmcnt(0)")
    a(f"v_xor_b32 v48, s{s_non}, v46")
    a(f"v_xor_b32 v49, s{s_non+1}, v47")
    a("v_or_b32 v48, v48, v49")
    a("v_cmp_ne_u32 vcc, 0, v48")
    a("s_nop 4")
    a("s_cbranch_vccnz L_gloop")
    a(f"ds_write_b64 v{d}, v[44:45]")
    a("s_branch L_k_fin")
    if DUAL:
        a.label("L_gokA")
        a(f"ds_write_b64 v{d}, v[40:41]")
        a("s_branch L_k_fin")
    a.label("L_k_den")
    for i in range(1, 8): a(f"v_add_f32 v32, v32, v{32+i}")
    a(f"v_and_b32 v{d}, 7, v{v_lane}")
    a(f"v_lshlrev_b32 v{v_t}, 4, v{d}")
    a(f"s_lshl_b32 s{s_wsoff}, s{s_head}, 7")
    a(f"s_add_u32 s{s_wsoff}, s{s_wsoff}, {WS_DEN}")
    a(f"s_add_u32 s{s_t1}, s{s_wsoff}, {WS_B}")
    a(f"v_cmp_eq_u32 {sr(s_cmp,2)}, {CONS}, v{d}")
    a.label("L_dloop")
    if DUAL: a(f"buffer_load_dwordx4 v[40:43], v{v_t}, {sr(S_WS,4)}, s{s_wsoff} offen sc1")
    a(f"buffer_load_dwordx4 v[44:47], v{v_t}, {sr(S_WS,4)}, s{s_t1} offen sc1")
    a("s_waitcnt vmcnt(0)")
    a(f"v_xor_b32 v48, s{s_non}, v46")
    a(f"v_xor_b32 v49, s{s_non+1}, v47")
    a("v_or_b32 v48, v48, v49")
    a("v_cmp_eq_u32 vcc, 0, v48")
    if DUAL:
        a(f"v_xor_b32 v50, s{s_non}, v42")
        a(f"v_xor_b32 v51, s{s_non+1}, v43")
        a("v_or_b32 v50, v50, v51")
        a(f"v_cmp_eq_u32 {sr(s_exec,2)}, 0, v50")
        a("s_nop 1")
        a(f"v_cndmask_b32 v44, v44, v40, {sr(s_exec,2)}")
        a(f"s_or_b64 vcc, vcc, {sr(s_exec,2)}")
    a("s_nop 1")
    a(f"s_or_b64 vcc, vcc, {sr(s_cmp,2)}")
    a("s_cmp_eq_u64 vcc, -1")
    a("s_cbranch_scc0 L_dloop")
    a(f"v_cndmask_b32 v44, v44, v32, {sr(s_cmp,2)}")
    a("s_nop 1")
    a("v_add_f32_dpp v44, v44, v44 quad_perm:[1,0,3,2] row_mask:0xf bank_mask:0xf")
    a("s_nop 1")
    a("v_add_f32_dpp v44, v44, v44 quad_perm:[2,3,0,1] row_mask:0xf bank_mask:0xf")
    a("s_nop 1")
    a("v_add_f32_dpp v44, v44, v44 row_half_mirror row_mask:0xf bank_mask:0xf")
    a(f"v_cvt_pk_bf16_f32 v44, v44, v44")
    a(f"v_and_b32 v44, s{s_mask}, v44")
    a(f"v_add_f32 v44, 0x{f32bits(1e-6):08x}, v44")
    a(f"v_cvt_pk_bf16_f32 v44, v44, v44")
    a(f"v_and_b32 v44, s{s_mask}, v44")
    a(f"v_rcp_f32 v44, v44")
    a(f"v_mov_b32 v45, {LDS_RDEN}")
    a("s_mov_b64 exec, 1")
    a("ds_write_b32 v45, v44")
    a("s_mov_b64 exec, -1")
    a.label("L_k_fin")
    a("s_waitcnt lgkmcnt(0)")
    a("s_barrier")
    dump_stamps(7)
    a("s_endpgm")

    a.label("L_vwave")
    v_vo = 6; v_sel = 8; v_xa = 12; v_wb = 14; v_VA = 16; v_VD = 24; v_non = 28
    v_V = 32; v_r = 160
    QB = v_V + 4 * EARLY
    qA, qB, qacc, qtmp, qnsq, qsq, qc3 = QB, QB + 16, QB + 32, QB + 40, QB + 64, QB + 65, QB + 66
    a(f"s_sub_u32 s{s_wave}, s{s_wave}, 8")
    a(f"s_lshl_b32 s{s_t0}, s{s_wave}, 15")
    a(f"s_add_u32 s{s_koff}, s{s_koff}, s{s_t0}")
    a(f"v_lshlrev_b32 v{v_vo}, 4, v{v_lane}")
    a(f"v_lshlrev_b32 v{v_t}, 4, v{v_g}")
    a(f"v_mov_b32 v{v_r}, {LDS_FLAG}")
    a(f"v_mov_b32 v{v_r+1}, 0")
    a(f"ds_write_b32 v{v_r}, v{v_r+1}")
    a(f"s_lshl_b32 s{s_t0}, s{s_wave}, 12")
    a(f"v_lshl_add_u32 v{v_r+4}, v{v_n}, 8, v{v_u}")
    a(f"v_add_u32 v{v_r+4}, s{s_t0}, v{v_r+4}")
    for t in range(1, 4):
        a(f"v_xor_b32 v{v_r+4+t}, {64*t}, v{v_r+4}")
    consts()
    a(f"v_mov_b32 v{qc3}, 0x{f32bits(-3.0):08x}")
    a(f"v_mov_b32 v{qc3+1}, 0x{f32bits(-3.0):08x}")
    a("s_waitcnt lgkmcnt(0)")
    stamp(1)
    a(f"v_add_u32 v{v_t}, {LDS_Q}, v{v_t}")
    def vload(j):
        if j % 4 == 0: a(f"s_add_u32 s{s_t1}, s{s_koff}, {4096*(j//4)}")
        a(f"buffer_load_dwordx4 {vr(v_V+4*j,4)}, v{v_vo}, {sr(S_V,4)}, s{s_t1} offen offset:{1024*(j%4)} {POLV}")
    for j in range(EARLY): vload(j)
    a("s_barrier")
    if VPRIO: a(f"s_setprio {VPRIO}")
    for t in range(4):
        a(f"ds_read_b128 {vr(qB+4*t,4)}, v{v_t} offset:{64*t}")
    for t in range(4):
        a(f"ds_read_b128 {vr(qA+4*t,4)}, v{v_r+4+t} offset:{LDS_OM}")
    a("s_waitcnt lgkmcnt(4)")
    prep(qB, qtmp, 12, qsq)
    a("s_waitcnt lgkmcnt(0)")
    for t in range(4):
        c = "0" if t == 0 else vr(qacc, 4)
        a(f"v_mfma_f32_16x16x32_bf16 {vr(qacc,4)}, {vr(qA+4*t,4)}, {vr(qB+4*t,4)}, {c}")
    a(f"v_mov_b32 v{v_t}, v{qsq}")
    a("s_nop 1")
    a(f"v_permlane32_swap_b32 v{qsq}, v{v_t}")
    a("s_nop 0")
    a(f"v_add_f32 v{qsq}, v{qsq}, v{v_t}")
    a(f"v_mov_b32 v{v_t}, v{qsq}")
    a("s_nop 1")
    a(f"v_permlane16_swap_b32 v{qsq}, v{v_t}")
    a("s_nop 0")
    a(f"v_add_f32 v{qsq}, v{qsq}, v{v_t}")
    a(f"v_cvt_pk_bf16_f32 v{qsq}, v{qsq}, v{qsq}")
    a(f"v_and_b32 v{qsq}, s{s_mask}, v{qsq}")
    a(f"v_mul_f32 v{qnsq}, -0.5, v{qsq}")
    a("s_nop 1")
    QX = lambda p: qacc + 2 * p
    expstages(QX, 2, qnsq, qc3)
    a(f"v_mov_b32 v{qtmp}, 0x{f32bits(1e-6):08x}")
    a(f"v_mov_b32 v{qtmp+1}, 0x{f32bits(1e-6):08x}")
    for p in range(2): a(f"v_pk_add_f32 {vr(QX(p),2)}, {vr(QX(p),2)}, {vr(qtmp,2)}")
    for p in range(2): a(f"v_cvt_pk_bf16_f32 v{qtmp+2+p}, v{QX(p)}, v{QX(p)+1}")
    a(f"s_lshl_b32 s{s_t0}, s{s_wave}, 3")
    a(f"s_add_u32 s{s_t0}, s{s_t0}, {LDS_PQ}")
    a(f"v_lshlrev_b32 v{v_t}, 5, v{v_g}")
    a(f"v_add_u32 v{v_t}, s{s_t0}, v{v_t}")
    a(f"v_mov_b32 v{v_r+1}, 1")
    a(f"s_mov_b32 s{s_exec}, 0x00010001")
    a(f"s_mov_b32 s{s_exec+1}, 0x00010001")
    a(f"s_mov_b64 exec, {sr(s_exec,2)}")
    a(f"ds_write_b64 v{v_t}, {vr(qtmp+2,2)}")
    a("s_mov_b64 exec, 1")
    a(f"ds_add_u32 v{v_r}, v{v_r+1}")
    a(f"s_cmp_lg_u32 s{s_wave}, 0")
    a("s_cbranch_scc1 L_v_nononce")
    a(f"s_memrealtime {sr(s_non,2)}")
    a(f"v_mov_b32 v{v_non+2}, 0")
    a(f"v_mov_b32 v{v_non+3}, 0")
    a(f"s_lshl_b32 s{s_t0}, s{s_head}, 3")
    a(f"v_mov_b32 v{v_t}, s{s_t0}")
    a("s_waitcnt lgkmcnt(0)")
    a(f"s_or_b32 s{s_non}, s{s_non}, 1")
    a(f"v_mov_b32 v{v_non}, s{s_non}")
    a(f"v_mov_b32 v{v_non+1}, s{s_non+1}")
    a(f"buffer_atomic_cmpswap_x2 {vr(v_non,4)}, v{v_t}, {sr(S_DBG,4)}, 0 offen sc0")
    a.label("L_v_nononce")
    a("s_mov_b64 exec, -1")
    if VPRIO: a("s_setprio 0")
    stamp(2)
    for j in range(EARLY, 32): vload(j)
    stamp(3)
    t0, t1, t2 = v_r, v_r + 1, v_r + 2
    a(f"v_mov_b32 v{t0}, 0x0302")
    a(f"v_mov_b32 v{t1}, 0x0100")
    a(f"v_cmp_gt_u32 vcc, 8, v{v_n}")
    a("s_nop 1")
    a(f"v_cndmask_b32 v{t0}, v{t1}, v{t0}, vcc")
    a(f"v_lshlrev_b32 v{t1}, 16, v{t0}")
    a(f"v_or_b32 v{t1}, 0x0c0c, v{t1}")
    a(f"v_or_b32 v{t0}, 0x0c0c0000, v{t0}")
    a(f"v_and_b32 v{t2}, 1, v{v_n}")
    a(f"v_cmp_eq_u32 vcc, 1, v{t2}")
    a("s_nop 1")
    a(f"v_cndmask_b32 v{t0}, v{t0}, v{t1}, vcc")
    a(f"v_bfe_u32 v{t2}, v{v_n}, 1, 2")
    a(f"v_mov_b32 v{t1}, 0x0c0c0c0c")
    for k in range(4):
        a(f"v_cmp_eq_u32 vcc, {k}, v{t2}")
        a("s_nop 1")
        a(f"v_cndmask_b32 v{v_sel+k}, v{t1}, v{t0}, vcc")
    a(f"s_lshl_b32 s{s_t0}, s{s_wave}, 9")
    a(f"s_add_u32 s{s_t0}, s{s_t0}, {LDS_X}")
    a(f"v_lshl_add_u32 v{t2}, v{v_n}, 2, v{v_g}")
    a(f"v_lshlrev_b32 v{t2}, 2, v{t2}")
    a(f"v_add_u32 v{t2}, s{s_t0}, v{t2}")
    a(f"s_lshl_b32 s{s_t0}, s{s_wave}, 9")
    a(f"s_add_u32 s{s_t0}, s{s_t0}, {LDS_RED}")
    a(f"v_lshlrev_b32 v{v_t}, 3, v{v_lane}")
    a(f"v_add_u32 v{v_t}, s{s_t0}, v{v_t}")
    a(f"s_cmp_lg_u32 s{s_wave}, 0")
    a("s_cbranch_scc1 L_v_b2")
    a(f"s_waitcnt vmcnt({32-EARLY})")
    a(f"v_readfirstlane_b32 s{s_t0}, v{v_non}")
    a(f"v_readfirstlane_b32 s{s_t1}, v{v_non+1}")
    a("s_nop 3")
    a(f"s_or_b32 s{s_cmp}, s{s_t0}, s{s_t1}")
    a(f"s_cmp_eq_u32 s{s_cmp}, 0")
    a(f"s_cselect_b32 s{s_non}, s{s_non}, s{s_t0}")
    a(f"s_cselect_b32 s{s_non+1}, s{s_non+1}, s{s_t1}")
    a(f"v_mov_b32 v{t0}, {LDS_NON}")
    a(f"v_mov_b32 v{v_non}, s{s_non}")
    a(f"v_mov_b32 v{v_non+1}, s{s_non+1}")
    a(f"ds_write_b64 v{t0}, {vr(v_non,2)}")
    a("s_waitcnt lgkmcnt(0)")
    a.label("L_v_b2")
    a("s_barrier")
    stamp(4)
    a(f"ds_read_b32 v{v_xa}, v{t2}")
    a(f"ds_read_b32 v{v_xa+1}, v{t2} offset:256")
    a("s_waitcnt lgkmcnt(0)")
    def buildA(j):
        wb = v_wb + (j % 2)
        A = v_VA + 4 * (j % 2)
        a(f"v_mov_b32_dpp v{wb}, v{v_xa + j // 16} row_newbcast:{j % 16} row_mask:0xf bank_mask:0xf")
        for k in range(4):
            a(f"v_perm_b32 v{A+k}, v{wb}, v{wb}, v{v_sel+k}")
    a("s_mov_b32 s3, 0")
    a.label("L_vphase")
    buildA(0)
    for j in range(32):
        if j + 1 < 32: buildA(j + 1)
        else: a("s_nop 1")
        a(f"s_waitcnt vmcnt({31-j})")
        c = "0" if j == 0 else vr(v_VD, 4)
        a(f"v_mfma_f32_16x16x32_bf16 {vr(v_VD,4)}, {vr(v_VA+4*(j%2),4)}, {vr(v_V+4*j,4)}, {c}")
    if DRY:
        a("s_cmp_eq_u32 s3, 1")
        a("s_cbranch_scc1 L_k_dryback")
    stamp(5)
    a("s_nop 7")
    a(f"v_permlane32_swap_b32 v{v_VD}, v{v_VD+2}")
    a(f"v_permlane32_swap_b32 v{v_VD+1}, v{v_VD+3}")
    a("s_nop 0")
    a(f"v_add_f32 v{v_VD}, v{v_VD}, v{v_VD+2}")
    a(f"v_add_f32 v{v_VD+1}, v{v_VD+1}, v{v_VD+3}")
    a(f"ds_write_b64 v{v_t}, {vr(v_VD,2)}")
    a("s_waitcnt lgkmcnt(0)")
    a("s_barrier")
    a(f"s_cmp_eq_u32 s{s_wave}, 0")
    a("s_cbranch_scc1 L_final")
    if DIAG:
        a(f"s_add_u32 s{s_wave}, s{s_wave}, 8")
        dump_stamps(6)
    a("s_endpgm")
    a.label("L_final")
    R = v_V
    for u in range(1, 4):
        a(f"ds_read_b64 {vr(R+2*u,2)}, v{v_t} offset:{512*u}")
    N0, N1 = v_VD, v_VD + 1
    a(f"s_cmp_eq_u32 s{s_chunk}, {CONS}")
    a("s_cbranch_scc1 L_consumer")
    a(f"s_lshl_b32 s{s_wsoff}, s{s_head}, 13")
    a(f"v_lshlrev_b32 v{v_t}, 4, v{v_lane}")
    a(f"s_lshl_b32 s{s_t0}, s{s_chunk}, 10")
    a(f"s_add_u32 s{s_wsoff}, s{s_wsoff}, s{s_t0}")
    a(f"s_add_u32 s{s_t1}, s{s_wsoff}, {WS_B}")
    G = R + 16
    a(f"v_mov_b32 v{G+2}, s{s_non}")
    a(f"v_mov_b32 v{G+3}, s{s_non+1}")
    a("s_waitcnt lgkmcnt(0)")
    a(f"v_pk_add_f32 {vr(N0,2)}, {vr(N0,2)}, {vr(R+2,2)}")
    a(f"v_pk_add_f32 {vr(R+4,2)}, {vr(R+4,2)}, {vr(R+6,2)}")
    a(f"v_pk_add_f32 {vr(G,2)}, {vr(N0,2)}, {vr(R+4,2)}")
    if DUAL: a(f"buffer_store_dwordx4 {vr(G,4)}, v{v_t}, {sr(S_WS,4)}, s{s_wsoff} offen")
    a(f"buffer_store_dwordx4 {vr(G,4)}, v{v_t}, {sr(S_WS,4)}, s{s_t1} offen sc1")
    if DIAG:
        stamp(6)
        a(f"s_add_u32 s{s_wave}, s{s_wave}, 8")
        dump_stamps(7)
    a("s_endpgm")
    a.label("L_consumer")
    a(f"v_lshlrev_b32 v{v_t}, 3, v{v_lane}")
    a(f"v_add_u32 v{v_t}, {LDS_G}, v{v_t}")
    for i in range(7):
        a(f"ds_read_b64 {vr(R+8+2*i,2)}, v{v_t} offset:{512*i}")
    a(f"v_mov_b32 v{v_r+2}, {LDS_RDEN}")
    a(f"ds_read_b32 v{v_r+3}, v{v_r+2}")
    a(f"v_and_b32 v{v_t}, 1, v{v_g}")
    a(f"v_lshlrev_b32 v{v_t}, 1, v{v_t}")
    a(f"v_lshrrev_b32 v{v_r+1}, 1, v{v_g}")
    a(f"v_add_u32 v{v_t}, v{v_t}, v{v_r+1}")
    a(f"v_lshl_add_u32 v{v_t}, v{v_n}, 2, v{v_t}")
    a(f"v_lshlrev_b32 v{v_t}, 2, v{v_t}")
    a("s_waitcnt lgkmcnt(0)")
    P = lambda i: vr(R + 2 * i, 2)
    a(f"v_pk_add_f32 {vr(N0,2)}, {vr(N0,2)}, {P(1)}")
    a(f"v_pk_add_f32 {P(2)}, {P(2)}, {P(3)}")
    a(f"v_pk_add_f32 {P(4)}, {P(4)}, {P(5)}")
    a(f"v_pk_add_f32 {P(6)}, {P(6)}, {P(7)}")
    a(f"v_pk_add_f32 {P(8)}, {P(8)}, {P(9)}")
    a(f"v_pk_add_f32 {vr(N0,2)}, {vr(N0,2)}, {P(10)}")
    a(f"v_pk_add_f32 {P(2)}, {P(2)}, {P(4)}")
    a(f"v_pk_add_f32 {P(6)}, {P(6)}, {P(8)}")
    a(f"v_pk_add_f32 {vr(N0,2)}, {vr(N0,2)}, {P(2)}")
    a(f"v_pk_add_f32 {vr(N0,2)}, {vr(N0,2)}, {P(6)}")
    a(f"v_cvt_pk_bf16_f32 v{v_r}, v{N0}, v{N1}")
    a(f"v_lshlrev_b32 v{N0}, 16, v{v_r}")
    a(f"v_and_b32 v{N1}, s{s_mask}, v{v_r}")
    a(f"v_mul_f32 v{N0}, v{N0}, v{v_r+3}")
    a(f"v_mul_f32 v{N1}, v{N1}, v{v_r+3}")
    a(f"v_cvt_pk_bf16_f32 v{v_r}, v{N0}, v{N1}")
    a(f"buffer_store_dword v{v_r}, v{v_t}, {sr(S_OUT,4)}, s{s_qoff} offen {opts.get('outpol','').replace('+',' ')}")
    if DIAG:
        stamp(6)
        a(f"s_add_u32 s{s_wave}, s{s_wave}, 8")
        dump_stamps(7)
    a.label("L_end")
    a("s_endpgm")
    return finish(a, LDS_TOTAL, NVGPR, NSGPR, 768)

if __name__ == "__main__":
    opts = {}; outp = None
    for arg in sys.argv[1:]:
        if "=" in arg:
            k, v = arg.split("=", 1)
            if v in ("0", "1") and k in ("diag",): v = bool(int(v))
            opts[k] = v
        else: outp = arg
    txt = gen(opts)
    if outp: open(outp, "w").write(txt)
    else: sys.stdout.write(txt)
```

```python
import sys, struct
from gen2 import Asm, vr, sr, f32bits, finish, NAME

def gen(opts):
    POLK = opts.get("polk", "nt").replace("+", " ").replace("none", "")
    POLV = opts.get("polv", "nt").replace("+", " ").replace("none", "")
    MAP = opts.get("map", "ch")
    DIAG = opts.get("diag", False)
    PRIO = int(opts.get("prio", 0))
    AHEAD = int(opts.get("ahead", 1))
    VPRIO = int(opts.get("vprio", 3))
    REST = int(opts.get("rest", 1))
    CONS = int(opts.get("cons", 5))
    DUAL = int(opts.get("dual", 0))
    SLEEP = int(opts.get("sleep", 0))
    VP2 = int(opts.get("vp2", 0))
    DRY = int(opts.get("dry", 0))
    PUBPOL = opts.get("pubpol", "sc1").replace("+", " ").replace("none", "")
    POLLPOL = opts.get("pollpol", "sc1").replace("+", " ").replace("none", "")
    EARLY = int(opts.get("early", 0))
    assert EARLY % 4 == 0 and EARLY <= 12
    a = Asm()

    LDS_OM, LDS_K = 0, 16384
    LDS_X = LDS_K + 131072
    LDS_DEN = LDS_X + 2048
    LDS_FLAG = LDS_DEN + 32
    LDS_PQ = LDS_DEN + 64
    LDS_RED = LDS_DEN + 256
    LDS_Q = LDS_RED + 2048
    LDS_G = LDS_Q + 1024
    LDS_NON = LDS_DEN + 48
    LDS_RDEN = LDS_DEN + 56
    LDS_TOTAL = LDS_G + 4096
    WS_A, WS_B, WS_DEN = 0, 0x100000, 0x80000

    S_K, S_V, S_OM, S_Q, S_OUT, S_DBG, S_WS = 8, 12, 16, 20, 24, 28, 32
    s_head, s_chunk, s_wave = 36, 37, 38
    s_koff, s_t0, s_t1 = 39, 40, 41
    s_scale = 42; s_log2e = 44; s_mask = 46; s_qoff = 47
    s_non = 48; s_exec = 50; s_cmp = 52; s_wsoff = 54; s_it = 55; s_rowm = 56
    s_sel0, s_sel1 = 58, 59
    s_kl = 61; s_knext = 62; s_lnext = 63
    NSGPR = 102 if DIAG else 64
    ST0 = 64
    def stamp(i):
        if DIAG: a(f"s_memrealtime s[{ST0+2*i}:{ST0+2*i+1}]")
    def dump_stamps(n):
        if not DIAG: return
        a("s_waitcnt lgkmcnt(0)")
        a("v_mov_b32 v20, 0")
        for i in range(n):
            a(f"v_mov_b32 v21, s{ST0+2*i}")
            a(f"v_cmp_eq_u32 vcc, {i}, v1")
            a("s_nop 1")
            a("v_cndmask_b32 v20, v20, v21, vcc")
        a("s_lshl_b32 s100, s2, 4")
        a(f"s_add_u32 s100, s100, s{s_wave}")
        a("s_lshl_b32 s100, s100, 7")
        a("s_add_u32 s100, s100, 0x400000")
        a("v_lshlrev_b32 v21, 2, v1")
        a("v_cmp_gt_u32 vcc, 16, v1")
        a("s_and_saveexec_b64 s[98:99], vcc")
        a(f"buffer_store_dword v20, v21, {sr(S_WS,4)}, s100 offen")
        a("s_mov_b64 exec, s[98:99]")

    v_lane, v_n, v_g, v_u, v_t = 1, 2, 3, 4, 5
    NVGPR = 168
    sc = f32bits(float(128) ** -0.25)
    l2e = f32bits(1.4426950408889634)

    def consts():
        a(f"s_mov_b32 s{s_scale}, 0x{sc:08x}")
        a(f"s_mov_b32 s{s_scale+1}, 0x{sc:08x}")
        a(f"s_mov_b32 s{s_log2e}, 0x{l2e:08x}")
        a(f"s_mov_b32 s{s_log2e+1}, 0x{l2e:08x}")
        a(f"s_mov_b32 s{s_sel0}, 0x00003f80")
        a(f"s_mov_b32 s{s_sel1}, 0x3f800000")

    def prep(B, tmp, NT, sq):
        for i0 in range(0, 16, 4):
            idx = range(i0, i0 + 4)
            T = lambda i: tmp + 2 * (i % NT)
            for i in idx: a(f"v_lshlrev_b32 v{T(i)}, 16, v{B+i}")
            for i in idx: a(f"v_and_b32 v{T(i)+1}, s{s_mask}, v{B+i}")
            for i in idx: a(f"v_pk_mul_f32 {vr(T(i),2)}, {vr(T(i),2)}, {sr(s_scale,2)}")
            for i in idx: a(f"v_cvt_pk_bf16_f32 v{B+i}, v{T(i)}, v{T(i)+1}")
            for i in idx:
                if i == 0: a(f"v_dot2_f32_bf16 v{sq}, v{B+i}, v{B+i}, 0")
                else: a(f"v_dot2c_f32_bf16 v{sq}, v{B+i}, v{B+i}")

    def expstages(X0, npairs, nsq, c3):
        for p in range(npairs): a(f"v_cvt_pk_bf16_f32 v{X0(p)}, v{X0(p)}, v{X0(p)+1}")
        if npairs < 4: a("s_nop 1")
        for p in range(npairs): a(f"v_dot2_f32_bf16 v{X0(p)+1}, v{X0(p)}, s{s_sel1}, v{nsq}")
        for p in range(npairs): a(f"v_dot2_f32_bf16 v{X0(p)}, v{X0(p)}, s{s_sel0}, v{nsq}")
        if npairs < 4: a("s_nop 3")
        for p in range(npairs): a(f"v_cvt_pk_bf16_f32 v{X0(p)}, v{X0(p)}, v{X0(p)+1}")
        for p in range(npairs):
            a(f"v_and_b32 v{X0(p)+1}, s{s_mask}, v{X0(p)}")
            a(f"v_lshlrev_b32 v{X0(p)}, 16, v{X0(p)}")
        for p in range(npairs): a(f"v_pk_fma_f32 {vr(X0(p),2)}, {vr(X0(p),2)}, {sr(s_log2e,2)}, {vr(c3,2)}")
        for p in range(npairs):
            a(f"v_exp_f32 v{X0(p)}, v{X0(p)}")
            a(f"v_exp_f32 v{X0(p)+1}, v{X0(p)+1}")

    a.label(NAME)
    a("s_cmp_ge_u32 s2, 256")
    a("s_cbranch_scc1 L_end")
    stamp(0)
    a(f"s_load_dwordx2 {sr(S_OM,2)}, s[0:1], 24")
    a(f"s_load_dwordx2 {sr(S_K,2)}, s[0:1], 8")
    a(f"s_load_dwordx2 {sr(S_Q,2)}, s[0:1], 0")
    a(f"s_load_dwordx2 {sr(S_V,2)}, s[0:1], 16")
    a(f"s_load_dwordx2 {sr(S_OUT,2)}, s[0:1], 32")
    a(f"s_load_dwordx2 {sr(S_DBG,2)}, s[0:1], 40")
    a(f"s_load_dwordx2 {sr(S_WS,2)}, s[0:1], 48")
    a(f"v_lshrrev_b32 v{v_t}, 6, v0")
    a(f"v_and_b32 v{v_lane}, 63, v0")
    a(f"v_readfirstlane_b32 s{s_wave}, v{v_t}")
    for s, n in ((S_K, 0x2000000), (S_V, 0x2000000), (S_OM, 16384), (S_Q, 8192), (S_OUT, 8192), (S_DBG, 256), (S_WS, 0x800000)):
        a(f"s_mov_b32 s{s+2}, 0x{n:x}")
        a(f"s_mov_b32 s{s+3}, 0x00020000")
    if MAP == "hc":
        a(f"s_and_b32 s{s_head}, s2, 31")
        a(f"s_lshr_b32 s{s_chunk}, s2, 5")
    elif MAP == "hc2":
        a(f"s_and_b32 s{s_head}, s2, 7")
        a(f"s_lshl_b32 s{s_head}, s{s_head}, 2")
        a(f"s_lshr_b32 s{s_t0}, s2, 3")
        a(f"s_and_b32 s{s_t0}, s{s_t0}, 3")
        a(f"s_add_u32 s{s_head}, s{s_head}, s{s_t0}")
        a(f"s_lshr_b32 s{s_chunk}, s2, 5")
    else:
        a(f"s_lshr_b32 s{s_head}, s2, 3")
        a(f"s_and_b32 s{s_chunk}, s2, 7")
    a(f"v_and_b32 v{v_n}, 15, v0")
    a(f"v_lshrrev_b32 v{v_g}, 4, v{v_lane}")
    a(f"s_lshl_b32 s{s_koff}, s{s_head}, 20")
    a(f"s_lshl_b32 s{s_t0}, s{s_chunk}, 17")
    a(f"s_add_u32 s{s_koff}, s{s_koff}, s{s_t0}")
    a(f"s_lshl_b32 s{s_qoff}, s{s_head}, 8")
    a(f"s_mov_b32 s{s_mask}, 0xffff0000")
    a(f"v_xor_b32 v{v_u}, v{v_n}, v{v_g}")
    a(f"v_lshlrev_b32 v{v_u}, 4, v{v_u}")
    a(f"s_cmp_ge_u32 s{s_wave}, 8")
    a("s_cbranch_scc1 L_vwave")

    v_dma = 6; v_a = 10; v_om0, v_om1 = 14, 15
    v_nsq, v_sq = 16, 17
    v_X, v_X2 = 18, 19
    v_c3 = 20; v_c0 = 24; v_D = 28
    v_A = 32; v_B = 96; v_acc = 112; v_pq = 128; v_P = 136; v_tmp = 144; NT = 12
    a(f"v_lshl_add_u32 v{v_dma}, v{v_g}, 8, v{v_u}")
    for jj in range(1, 4):
        a(f"v_xor_b32 v{v_dma+jj}, {64*jj}, v{v_dma}")
    a(f"s_lshl_b32 s{s_t0}, s{s_wave}, 14")
    a(f"s_add_u32 s{s_knext}, s{s_koff}, s{s_t0}")
    a(f"s_add_u32 s{s_kl}, s{s_t0}, {LDS_K}")
    a(f"s_mov_b32 s{s_lnext}, s{s_kl}")
    a(f"s_lshl_b32 s{s_t0}, s{s_wave}, 12")
    a(f"s_mov_b32 m0, s{s_t0}")
    if PRIO: a(f"s_setprio {PRIO}")
    def ktile():
        a(f"s_mov_b32 m0, s{s_lnext}")
        a(f"s_add_u32 s{s_lnext}, s{s_lnext}, 4096")
        for jj in range(4):
            a(f"buffer_load_dwordx4 v{v_dma+jj}, {sr(S_K,4)}, s{s_knext} offen offset:{1024*jj} {POLK} lds")
        a(f"s_add_u32 s{s_knext}, s{s_knext}, 4096")
    a("s_waitcnt lgkmcnt(0)")
    stamp(1)
    a(f"s_cmp_ge_u32 s{s_wave}, 4")
    a("s_cbranch_scc1 L_k_noom")
    for jj in range(4):
        a(f"buffer_load_dwordx4 v{v_dma+jj}, {sr(S_OM,4)}, s{s_t0} offen offset:{1024*jj} lds")
    a(f"s_cmp_lg_u32 s{s_wave}, 0")
    a("s_cbranch_scc1 L_k_noom")
    a(f"s_mov_b32 m0, {LDS_Q}")
    a(f"v_lshlrev_b32 v{v_t}, 4, v{v_lane}")
    a(f"buffer_load_dwordx4 v{v_t}, {sr(S_Q,4)}, s{s_qoff} offen lds")
    a.label("L_k_noom")
    for T in range(AHEAD): ktile()
    stamp(2)
    a(f"v_lshl_add_u32 v{v_a}, v{v_n}, 8, v{v_u}")
    for t in range(1, 4):
        a(f"v_xor_b32 v{v_a+t}, {64*t}, v{v_a}")
    consts()
    a(f"v_mov_b32 v{v_c3}, 0x{f32bits(-3.0):08x}")
    a(f"v_mov_b32 v{v_c3+1}, 0x{f32bits(-3.0):08x}")
    a(f"s_mov_b32 s{s_it}, 0")
    a(f"s_mov_b64 {sr(s_rowm,2)}, 0xffff")
    a(f"v_mov_b32 v{v_X}, 0")
    a(f"s_waitcnt vmcnt({4*AHEAD})")
    a("s_barrier")
    stamp(3)
    for mt in range(4):
        for t in range(4):
            a(f"ds_read_b128 {vr(v_A+16*mt+4*t,4)}, v{v_a+t} offset:{LDS_OM+4096*mt}")
    for t in range(4):
        a(f"v_add_u32 v{v_a+t}, s{s_kl}, v{v_a+t}")
    if REST:
        for T in range(4 - AHEAD): ktile()
    a.label("L_tile")
    if REST:
        a(f"s_cmp_ge_u32 s{s_it}, 2")
        a("s_cbranch_scc1 L_w23")
        a(f"s_cmp_eq_u32 s{s_it}, 1")
        a("s_cbranch_scc1 L_w1")
        a("s_waitcnt vmcnt(12)")
        a("s_branch L_go")
        a.label("L_w1")
        a("s_waitcnt vmcnt(8)")
        a("s_branch L_go")
        a.label("L_w23")
        a(f"s_cmp_eq_u32 s{s_it}, 3")
        a("s_cbranch_scc1 L_w0")
        a("s_waitcnt vmcnt(4)")
        a("s_branch L_go")
        a.label("L_w0")
        a("s_waitcnt vmcnt(0)")
        a.label("L_go")
    elif AHEAD == 2:
        a(f"s_cmp_eq_u32 s{s_it}, 3")
        a("s_cbranch_scc1 L_w0")
        a("s_waitcnt vmcnt(4)")
        a("s_branch L_go")
        a.label("L_w0")
        a("s_waitcnt vmcnt(0)")
        a.label("L_go")
    elif AHEAD == 3:
        a(f"s_cmp_ge_u32 s{s_it}, 2")
        a("s_cbranch_scc1 L_w23")
        a("s_waitcnt vmcnt(8)")
        a("s_branch L_go")
        a.label("L_w23")
        a(f"s_cmp_eq_u32 s{s_it}, 3")
        a("s_cbranch_scc1 L_w0")
        a("s_waitcnt vmcnt(4)")
        a("s_branch L_go")
        a.label("L_w0")
        a("s_waitcnt vmcnt(0)")
        a.label("L_go")
    for t in range(4):
        a(f"ds_read_b128 {vr(v_B+4*t,4)}, v{v_a+t}")
    for t in range(4):
        a(f"v_add_u32 v{v_a+t}, 4096, v{v_a+t}")
    if not REST:
        a(f"s_cmp_ge_u32 s{s_it}, {4-AHEAD}")
        a("s_cbranch_scc1 L_noissue")
        ktile()
        a.label("L_noissue")
    a("s_waitcnt lgkmcnt(0)")
    prep(v_B, v_tmp, NT, v_sq)
    def mf(t, mt):
        c = "0" if t == 0 else vr(v_acc+4*mt, 4)
        a(f"v_mfma_f32_16x16x32_bf16 {vr(v_acc+4*mt,4)}, {vr(v_A+16*mt+4*t,4)}, {vr(v_B+4*t,4)}, {c}")
    for mt in range(4): mf(0, mt)
    a(f"v_mov_b32 v{v_t}, v{v_sq}")
    mf(1, 0); mf(1, 1)
    a(f"v_permlane32_swap_b32 v{v_sq}, v{v_t}")
    mf(1, 2)
    a(f"v_add_f32 v{v_sq}, v{v_sq}, v{v_t}")
    mf(1, 3)
    a(f"v_mov_b32 v{v_t}, v{v_sq}")
    mf(2, 0); mf(2, 1)
    a(f"v_permlane16_swap_b32 v{v_sq}, v{v_t}")
    mf(2, 2)
    a(f"v_add_f32 v{v_sq}, v{v_sq}, v{v_t}")
    mf(2, 3)
    a(f"v_cvt_pk_bf16_f32 v{v_sq}, v{v_sq}, v{v_sq}")
    mf(3, 0)
    a(f"v_and_b32 v{v_sq}, s{s_mask}, v{v_sq}")
    mf(3, 1)
    a(f"v_mul_f32 v{v_nsq}, -0.5, v{v_sq}")
    mf(3, 2); mf(3, 3)
    a("s_nop 4")
    X0 = lambda p: v_acc + 2 * p
    expstages(X0, 8, v_nsq, v_c3)
    for p in range(8): a(f"v_cvt_pk_bf16_f32 v{v_P+p}, v{X0(p)}, v{X0(p)+1}")
    a(f"s_cmp_lg_u32 s{s_it}, 0")
    a("s_cbranch_scc1 L_havepq")
    a(f"v_mov_b32 v{v_tmp}, {LDS_FLAG}")
    a.label("L_pqwait")
    a(f"ds_read_b32 v{v_tmp+1}, v{v_tmp}")
    a("s_waitcnt lgkmcnt(0)")
    a(f"v_readfirstlane_b32 s{s_t0}, v{v_tmp+1}")
    a("s_nop 3")
    a(f"s_cmp_lt_u32 s{s_t0}, 4")
    a("s_cbranch_scc1 L_pqwait")
    a(f"v_lshlrev_b32 v{v_tmp}, 5, v{v_g}")
    a(f"v_add_u32 v{v_tmp}, {LDS_PQ}, v{v_tmp}")
    a(f"ds_read_b128 {vr(v_pq,4)}, v{v_tmp}")
    a(f"ds_read_b128 {vr(v_pq+4,4)}, v{v_tmp} offset:16")
    for i in range(4): a(f"v_mov_b32 v{v_tmp+4+i}, 0x3f803f80")
    a(f"v_mov_b32 v{v_tmp}, 0x{f32bits(1e-6):08x}")
    a("s_waitcnt lgkmcnt(0)")
    a(f"v_mfma_f32_16x16x32_bf16 {vr(v_D,4)}, {vr(v_pq,4)}, {vr(v_tmp+4,4)}, 0")
    a(f"v_mfma_f32_16x16x32_bf16 {vr(v_D,4)}, {vr(v_pq+4,4)}, {vr(v_tmp+4,4)}, {vr(v_D,4)}")
    a("s_nop 7")
    for i in range(4): a(f"v_mul_f32 v{v_c0+i}, v{v_tmp}, v{v_D+i}")
    stamp(4)
    a("s_nop 1")
    a.label("L_havepq")
    a(f"v_mfma_f32_16x16x32_bf16 {vr(v_D,4)}, {vr(v_pq,4)}, {vr(v_P,4)}, {vr(v_c0,4)}")
    a(f"v_mfma_f32_16x16x32_bf16 {vr(v_D,4)}, {vr(v_pq+4,4)}, {vr(v_P+4,4)}, {vr(v_D,4)}")
    a(f"s_add_u32 s{s_it}, s{s_it}, 1")
    a("s_nop 6")
    a(f"v_cndmask_b32 v{v_X}, v{v_X}, v{v_D}, {sr(s_rowm,2)}")
    a(f"s_lshl_b64 {sr(s_rowm,2)}, {sr(s_rowm,2)}, 16")
    a(f"s_cmp_lt_u32 s{s_it}, 4")
    a("s_cbranch_scc1 L_tile")
    stamp(5)
    a(f"v_cvt_pk_bf16_f32 v{v_t}, v{v_X}, v{v_X}")
    a(f"s_lshl_b32 s{s_t0}, s{s_wave}, 8")
    a(f"v_and_b32 v{v_t}, s{s_mask}, v{v_t}")
    a(f"s_add_u32 s{s_t0}, s{s_t0}, {LDS_X}")
    a(f"v_sub_f32 v{v_X2}, v{v_X}, v{v_t}")
    a(f"v_lshlrev_b32 v{v_tmp}, 2, v{v_lane}")
    a(f"v_cvt_pk_bf16_f32 v{v_X2}, v{v_X2}, v{v_t}")
    a(f"v_add_u32 v{v_tmp}, s{s_t0}, v{v_tmp}")
    a(f"ds_write_b32 v{v_tmp}, v{v_X2}")
    d = v_tmp + 2
    a(f"v_add_f32_dpp v{d}, v{v_X}, v{v_X} quad_perm:[1,0,3,2] row_mask:0xf bank_mask:0xf")
    a("s_nop 1")
    a(f"v_add_f32_dpp v{d}, v{d}, v{d} quad_perm:[2,3,0,1] row_mask:0xf bank_mask:0xf")
    a("s_nop 1")
    a(f"v_add_f32_dpp v{d}, v{d}, v{d} row_half_mirror row_mask:0xf bank_mask:0xf")
    a("s_nop 1")
    a(f"v_add_f32_dpp v{d}, v{d}, v{d} row_mirror row_mask:0xf bank_mask:0xf")
    a(f"v_mov_b32 v{d+1}, v{d}")
    a("s_nop 1")
    a(f"v_permlane32_swap_b32 v{d}, v{d+1}")
    a("s_nop 0")
    a(f"v_add_f32 v{d}, v{d}, v{d+1}")
    a(f"v_mov_b32 v{d+1}, v{d}")
    a("s_nop 1")
    a(f"v_permlane16_swap_b32 v{d}, v{d+1}")
    a("s_nop 0")
    a(f"v_add_f32 v{d}, v{d}, v{d+1}")
    a(f"s_lshl_b32 s{s_t0}, s{s_wave}, 2")
    a(f"s_add_u32 s{s_t0}, s{s_t0}, {LDS_DEN}")
    a(f"v_mov_b32 v{d+1}, s{s_t0}")
    a("s_mov_b64 exec, 1")
    a(f"ds_write_b32 v{d+1}, v{d}")
    a("s_mov_b64 exec, -1")
    a("s_waitcnt lgkmcnt(0)")
    a("s_barrier")
    stamp(6)
    a(f"v_mov_b32 v{d}, {LDS_NON}")
    a(f"v_mov_b32 v{d+1}, {LDS_DEN}")
    a(f"ds_read_b64 {vr(d+2,2)}, v{d}")
    a(f"ds_read_b128 {vr(32,4)}, v{d+1}")
    a(f"ds_read_b128 {vr(36,4)}, v{d+1} offset:16")
    a(f"s_cmp_eq_u32 s{s_chunk}, {CONS}")
    a("s_cbranch_scc1 L_k_cons")
    a(f"s_cmp_lg_u32 s{s_wave}, 0")
    a("s_cbranch_scc1 L_k_exit")
    a(f"s_lshl_b32 s{s_t0}, s{s_head}, 7")
    a(f"s_lshl_b32 s{s_t1}, s{s_chunk}, 4")
    a(f"s_add_u32 s{s_t0}, s{s_t0}, s{s_t1}")
    a(f"s_add_u32 s{s_t0}, s{s_t0}, {WS_DEN}")
    a(f"v_mov_b32 v{v_t}, 0")
    a("s_waitcnt lgkmcnt(0)")
    for i in range(1, 8): a(f"v_add_f32 v32, v32, v{32+i}")
    a(f"v_mov_b32 v33, 0")
    a(f"v_mov_b32 v34, v{d+2}")
    a(f"v_mov_b32 v35, v{d+3}")
    a("s_mov_b64 exec, 1")
    if DUAL: a(f"buffer_store_dwordx4 v[32:35], v{v_t}, {sr(S_WS,4)}, s{s_t0} offen offset:0")
    a(f"s_add_u32 s{s_t0}, s{s_t0}, {WS_B}")
    a(f"buffer_store_dwordx4 v[32:35], v{v_t}, {sr(S_WS,4)}, s{s_t0} offen sc1")
    a("s_mov_b64 exec, -1")
    a.label("L_k_exit")
    dump_stamps(7)
    a("s_endpgm")
    a.label("L_k_cons")
    a("s_waitcnt lgkmcnt(0)")
    a(f"v_readfirstlane_b32 s{s_non}, v{d+2}")
    a(f"v_readfirstlane_b32 s{s_non+1}, v{d+3}")
    a(f"s_cmp_eq_u32 s{s_wave}, 7")
    a("s_cbranch_scc1 L_k_den")
    a(f"s_cmp_ge_u32 s{s_wave}, {CONS}")
    a(f"s_cselect_b32 s{s_t0}, 1, 0")
    a(f"s_add_u32 s{s_t0}, s{s_t0}, s{s_wave}")
    a(f"s_lshl_b32 s{s_t0}, s{s_t0}, 10")
    a(f"s_lshl_b32 s{s_wsoff}, s{s_head}, 13")
    a(f"s_add_u32 s{s_wsoff}, s{s_wsoff}, s{s_t0}")
    a(f"s_add_u32 s{s_t1}, s{s_wsoff}, {WS_B}")
    a(f"v_lshlrev_b32 v{v_t}, 4, v{v_lane}")
    a(f"s_lshl_b32 s{s_t0}, s{s_wave}, 9")
    a(f"s_add_u32 s{s_t0}, s{s_t0}, {LDS_G}")
    a(f"v_lshlrev_b32 v{d}, 3, v{v_lane}")
    a(f"v_add_u32 v{d}, s{s_t0}, v{d}")
    a.label("L_gloop")
    if DUAL: a(f"buffer_load_dwordx4 v[40:43], v{v_t}, {sr(S_WS,4)}, s{s_wsoff} offen sc1")
    a(f"buffer_load_dwordx4 v[44:47], v{v_t}, {sr(S_WS,4)}, s{s_t1} offen sc1")
    if DUAL:
        a("s_waitcnt vmcnt(1)")
        a(f"v_xor_b32 v48, s{s_non}, v42")
        a(f"v_xor_b32 v49, s{s_non+1}, v43")
        a("v_or_b32 v48, v48, v49")
        a("v_cmp_ne_u32 vcc, 0, v48")
        a("s_nop 4")
        a("s_cbranch_vccz L_gokA")
    a("s_waitcnt vmcnt(0)")
    a(f"v_xor_b32 v48, s{s_non}, v46")
    a(f"v_xor_b32 v49, s{s_non+1}, v47")
    a("v_or_b32 v48, v48, v49")
    a("v_cmp_ne_u32 vcc, 0, v48")
    a("s_nop 4")
    if SLEEP:
        a("s_cbranch_vccz L_gokB")
        a(f"s_sleep {SLEEP}")
        a("s_branch L_gloop")
        a.label("L_gokB")
    else:
        a("s_cbranch_vccnz L_gloop")
    a(f"ds_write_b64 v{d}, v[44:45]")
    a("s_branch L_k_fin")
    if DUAL:
        a.label("L_gokA")
        a(f"ds_write_b64 v{d}, v[40:41]")
        a("s_branch L_k_fin")
    a.label("L_k_den")
    for i in range(1, 8): a(f"v_add_f32 v32, v32, v{32+i}")
    a(f"v_and_b32 v{d}, 7, v{v_lane}")
    a(f"v_lshlrev_b32 v{v_t}, 4, v{d}")
    a(f"s_lshl_b32 s{s_wsoff}, s{s_head}, 7")
    a(f"s_add_u32 s{s_wsoff}, s{s_wsoff}, {WS_DEN}")
    a(f"s_add_u32 s{s_t1}, s{s_wsoff}, {WS_B}")
    a(f"v_cmp_eq_u32 {sr(s_cmp,2)}, {CONS}, v{d}")
    a.label("L_dloop")
    if DUAL: a(f"buffer_load_dwordx4 v[40:43], v{v_t}, {sr(S_WS,4)}, s{s_wsoff} offen sc1")
    a(f"buffer_load_dwordx4 v[44:47], v{v_t}, {sr(S_WS,4)}, s{s_t1} offen sc1")
    a("s_waitcnt vmcnt(0)")
    a(f"v_xor_b32 v48, s{s_non}, v46")
    a(f"v_xor_b32 v49, s{s_non+1}, v47")
    a("v_or_b32 v48, v48, v49")
    a("v_cmp_eq_u32 vcc, 0, v48")
    if DUAL:
        a(f"v_xor_b32 v50, s{s_non}, v42")
        a(f"v_xor_b32 v51, s{s_non+1}, v43")
        a("v_or_b32 v50, v50, v51")
        a(f"v_cmp_eq_u32 {sr(s_exec,2)}, 0, v50")
        a("s_nop 1")
        a(f"v_cndmask_b32 v44, v44, v40, {sr(s_exec,2)}")
        a(f"s_or_b64 vcc, vcc, {sr(s_exec,2)}")
    a("s_nop 1")
    a(f"s_or_b64 vcc, vcc, {sr(s_cmp,2)}")
    a("s_cmp_eq_u64 vcc, -1")
    if SLEEP:
        a("s_cbranch_scc1 L_dok")
        a(f"s_sleep {SLEEP}")
        a("s_branch L_dloop")
        a.label("L_dok")
    else:
        a("s_cbranch_scc0 L_dloop")
    a(f"v_cndmask_b32 v44, v44, v32, {sr(s_cmp,2)}")
    a("s_nop 1")
    a("v_add_f32_dpp v44, v44, v44 quad_perm:[1,0,3,2] row_mask:0xf bank_mask:0xf")
    a("s_nop 1")
    a("v_add_f32_dpp v44, v44, v44 quad_perm:[2,3,0,1] row_mask:0xf bank_mask:0xf")
    a("s_nop 1")
    a("v_add_f32_dpp v44, v44, v44 row_half_mirror row_mask:0xf bank_mask:0xf")
    a(f"v_cvt_pk_bf16_f32 v44, v44, v44")
    a(f"v_and_b32 v44, s{s_mask}, v44")
    a(f"v_add_f32 v44, 0x{f32bits(1e-6):08x}, v44")
    a(f"v_cvt_pk_bf16_f32 v44, v44, v44")
    a(f"v_and_b32 v44, s{s_mask}, v44")
    a(f"v_rcp_f32 v44, v44")
    a(f"v_mov_b32 v45, {LDS_RDEN}")
    a("s_mov_b64 exec, 1")
    a("ds_write_b32 v45, v44")
    a("s_mov_b64 exec, -1")
    a.label("L_k_fin")
    a("s_waitcnt lgkmcnt(0)")
    a("s_barrier")
    dump_stamps(7)
    a("s_endpgm")

    a.label("L_vwave")
    v_vo = 6; v_sel = 8; v_xa = 12; v_wb = 14; v_VA = 16; v_VD = 24; v_non = 28
    v_V = 32; v_r = 160
    QB = v_V + 4 * EARLY
    qA, qB, qacc, qtmp, qnsq, qsq, qc3 = QB, QB + 16, QB + 32, QB + 40, QB + 64, QB + 65, QB + 66
    a(f"s_sub_u32 s{s_wave}, s{s_wave}, 8")
    a(f"s_lshl_b32 s{s_t0}, s{s_wave}, 15")
    a(f"s_add_u32 s{s_koff}, s{s_koff}, s{s_t0}")
    a(f"v_lshlrev_b32 v{v_vo}, 4, v{v_lane}")
    a(f"v_lshlrev_b32 v{v_t}, 4, v{v_g}")
    a(f"v_mov_b32 v{v_r}, {LDS_FLAG}")
    a(f"v_mov_b32 v{v_r+1}, 0")
    a(f"ds_write_b32 v{v_r}, v{v_r+1}")
    a(f"s_lshl_b32 s{s_t0}, s{s_wave}, 12")
    a(f"v_lshl_add_u32 v{v_r+4}, v{v_n}, 8, v{v_u}")
    a(f"v_add_u32 v{v_r+4}, s{s_t0}, v{v_r+4}")
    for t in range(1, 4):
        a(f"v_xor_b32 v{v_r+4+t}, {64*t}, v{v_r+4}")
    consts()
    a(f"v_mov_b32 v{qc3}, 0x{f32bits(-3.0):08x}")
    a(f"v_mov_b32 v{qc3+1}, 0x{f32bits(-3.0):08x}")
    a("s_waitcnt lgkmcnt(0)")
    stamp(1)
    a(f"v_add_u32 v{v_t}, {LDS_Q}, v{v_t}")
    def vload(j):
        if j % 4 == 0: a(f"s_add_u32 s{s_t1}, s{s_koff}, {4096*(j//4)}")
        a(f"buffer_load_dwordx4 {vr(v_V+4*j,4)}, v{v_vo}, {sr(S_V,4)}, s{s_t1} offen offset:{1024*(j%4)} {POLV}")
    for j in range(EARLY): vload(j)
    a("s_barrier")
    if VPRIO: a(f"s_setprio {VPRIO}")
    for t in range(4):
        a(f"ds_read_b128 {vr(qB+4*t,4)}, v{v_t} offset:{64*t}")
    for t in range(4):
        a(f"ds_read_b128 {vr(qA+4*t,4)}, v{v_r+4+t} offset:{LDS_OM}")
    a("s_waitcnt lgkmcnt(4)")
    prep(qB, qtmp, 12, qsq)
    a("s_waitcnt lgkmcnt(0)")
    for t in range(4):
        c = "0" if t == 0 else vr(qacc, 4)
        a(f"v_mfma_f32_16x16x32_bf16 {vr(qacc,4)}, {vr(qA+4*t,4)}, {vr(qB+4*t,4)}, {c}")
    a(f"v_mov_b32 v{v_t}, v{qsq}")
    a("s_nop 1")
    a(f"v_permlane32_swap_b32 v{qsq}, v{v_t}")
    a("s_nop 0")
    a(f"v_add_f32 v{qsq}, v{qsq}, v{v_t}")
    a(f"v_mov_b32 v{v_t}, v{qsq}")
    a("s_nop 1")
    a(f"v_permlane16_swap_b32 v{qsq}, v{v_t}")
    a("s_nop 0")
    a(f"v_add_f32 v{qsq}, v{qsq}, v{v_t}")
    a(f"v_cvt_pk_bf16_f32 v{qsq}, v{qsq}, v{qsq}")
    a(f"v_and_b32 v{qsq}, s{s_mask}, v{qsq}")
    a(f"v_mul_f32 v{qnsq}, -0.5, v{qsq}")
    a("s_nop 1")
    QX = lambda p: qacc + 2 * p
    expstages(QX, 2, qnsq, qc3)
    a(f"v_mov_b32 v{qtmp}, 0x{f32bits(1e-6):08x}")
    a(f"v_mov_b32 v{qtmp+1}, 0x{f32bits(1e-6):08x}")
    for p in range(2): a(f"v_pk_add_f32 {vr(QX(p),2)}, {vr(QX(p),2)}, {vr(qtmp,2)}")
    for p in range(2): a(f"v_cvt_pk_bf16_f32 v{qtmp+2+p}, v{QX(p)}, v{QX(p)+1}")
    a(f"s_lshl_b32 s{s_t0}, s{s_wave}, 3")
    a(f"s_add_u32 s{s_t0}, s{s_t0}, {LDS_PQ}")
    a(f"v_lshlrev_b32 v{v_t}, 5, v{v_g}")
    a(f"v_add_u32 v{v_t}, s{s_t0}, v{v_t}")
    a(f"v_mov_b32 v{v_r+1}, 1")
    a(f"s_mov_b32 s{s_exec}, 0x00010001")
    a(f"s_mov_b32 s{s_exec+1}, 0x00010001")
    a(f"s_mov_b64 exec, {sr(s_exec,2)}")
    a(f"ds_write_b64 v{v_t}, {vr(qtmp+2,2)}")
    a("s_mov_b64 exec, 1")
    a(f"ds_add_u32 v{v_r}, v{v_r+1}")
    a(f"s_cmp_lg_u32 s{s_wave}, 0")
    a("s_cbranch_scc1 L_v_nononce")
    a(f"s_memrealtime {sr(s_non,2)}")
    a(f"v_mov_b32 v{v_non+2}, 0")
    a(f"v_mov_b32 v{v_non+3}, 0")
    a(f"s_lshl_b32 s{s_t0}, s{s_head}, 3")
    a(f"v_mov_b32 v{v_t}, s{s_t0}")
    a("s_waitcnt lgkmcnt(0)")
    a(f"s_or_b32 s{s_non}, s{s_non}, 1")
    a(f"v_mov_b32 v{v_non}, s{s_non}")
    a(f"v_mov_b32 v{v_non+1}, s{s_non+1}")
    a(f"buffer_atomic_cmpswap_x2 {vr(v_non,4)}, v{v_t}, {sr(S_DBG,4)}, 0 offen sc0")
    a.label("L_v_nononce")
    a("s_mov_b64 exec, -1")
    if VPRIO: a("s_setprio 0")
    stamp(2)
    for j in range(EARLY, 32): vload(j)
    stamp(3)
    t0, t1, t2 = v_r, v_r + 1, v_r + 2
    a(f"v_mov_b32 v{t0}, 0x0302")
    a(f"v_mov_b32 v{t1}, 0x0100")
    a(f"v_cmp_gt_u32 vcc, 8, v{v_n}")
    a("s_nop 1")
    a(f"v_cndmask_b32 v{t0}, v{t1}, v{t0}, vcc")
    a(f"v_lshlrev_b32 v{t1}, 16, v{t0}")
    a(f"v_or_b32 v{t1}, 0x0c0c, v{t1}")
    a(f"v_or_b32 v{t0}, 0x0c0c0000, v{t0}")
    a(f"v_and_b32 v{t2}, 1, v{v_n}")
    a(f"v_cmp_eq_u32 vcc, 1, v{t2}")
    a("s_nop 1")
    a(f"v_cndmask_b32 v{t0}, v{t0}, v{t1}, vcc")
    a(f"v_bfe_u32 v{t2}, v{v_n}, 1, 2")
    a(f"v_mov_b32 v{t1}, 0x0c0c0c0c")
    for k in range(4):
        a(f"v_cmp_eq_u32 vcc, {k}, v{t2}")
        a("s_nop 1")
        a(f"v_cndmask_b32 v{v_sel+k}, v{t1}, v{t0}, vcc")
    a(f"s_lshl_b32 s{s_t0}, s{s_wave}, 9")
    a(f"s_add_u32 s{s_t0}, s{s_t0}, {LDS_X}")
    a(f"v_lshl_add_u32 v{t2}, v{v_n}, 2, v{v_g}")
    a(f"v_lshlrev_b32 v{t2}, 2, v{t2}")
    a(f"v_add_u32 v{t2}, s{s_t0}, v{t2}")
    a(f"s_lshl_b32 s{s_t0}, s{s_wave}, 9")
    a(f"s_add_u32 s{s_t0}, s{s_t0}, {LDS_RED}")
    a(f"v_lshlrev_b32 v{v_t}, 3, v{v_lane}")
    a(f"v_add_u32 v{v_t}, s{s_t0}, v{v_t}")
    a(f"s_cmp_lg_u32 s{s_wave}, 0")
    a("s_cbranch_scc1 L_v_b2")
    a(f"s_waitcnt vmcnt({32-EARLY})")
    a(f"v_readfirstlane_b32 s{s_t0}, v{v_non}")
    a(f"v_readfirstlane_b32 s{s_t1}, v{v_non+1}")
    a("s_nop 3")
    a(f"s_or_b32 s{s_cmp}, s{s_t0}, s{s_t1}")
    a(f"s_cmp_eq_u32 s{s_cmp}, 0")
    a(f"s_cselect_b32 s{s_non}, s{s_non}, s{s_t0}")
    a(f"s_cselect_b32 s{s_non+1}, s{s_non+1}, s{s_t1}")
    a(f"v_mov_b32 v{t0}, {LDS_NON}")
    a(f"v_mov_b32 v{v_non}, s{s_non}")
    a(f"v_mov_b32 v{v_non+1}, s{s_non+1}")
    a(f"ds_write_b64 v{t0}, {vr(v_non,2)}")
    a("s_waitcnt lgkmcnt(0)")
    a.label("L_v_b2")
    a("s_barrier")
    if VP2: a(f"s_setprio {VP2}")
    stamp(4)
    a(f"ds_read_b32 v{v_xa}, v{t2}")
    a(f"ds_read_b32 v{v_xa+1}, v{t2} offset:256")
    a("s_waitcnt lgkmcnt(0)")
    def buildA(j):
        wb = v_wb + (j % 2)
        A = v_VA + 4 * (j % 2)
        a(f"v_mov_b32_dpp v{wb}, v{v_xa + j // 16} row_newbcast:{j % 16} row_mask:0xf bank_mask:0xf")
        for k in range(4):
            a(f"v_perm_b32 v{A+k}, v{wb}, v{wb}, v{v_sel+k}")
    a("s_mov_b32 s3, 0")
    a.label("L_vphase")
    buildA(0)
    for j in range(32):
        if j + 1 < 32: buildA(j + 1)
        else: a("s_nop 1")
        a(f"s_waitcnt vmcnt({31-j})")
        c = "0" if j == 0 else vr(v_VD, 4)
        a(f"v_mfma_f32_16x16x32_bf16 {vr(v_VD,4)}, {vr(v_VA+4*(j%2),4)}, {vr(v_V+4*j,4)}, {c}")
    if DRY:
        a("s_cmp_eq_u32 s3, 1")
        a("s_cbranch_scc1 L_k_dryback")
    stamp(5)
    a("s_nop 7")
    a(f"v_permlane32_swap_b32 v{v_VD}, v{v_VD+2}")
    a(f"v_permlane32_swap_b32 v{v_VD+1}, v{v_VD+3}")
    a("s_nop 0")
    a(f"v_add_f32 v{v_VD}, v{v_VD}, v{v_VD+2}")
    a(f"v_add_f32 v{v_VD+1}, v{v_VD+1}, v{v_VD+3}")
    a(f"ds_write_b64 v{v_t}, {vr(v_VD,2)}")
    a("s_waitcnt lgkmcnt(0)")
    a("s_barrier")
    a(f"s_cmp_eq_u32 s{s_wave}, 0")
    a("s_cbranch_scc1 L_final")
    if DIAG:
        a(f"s_add_u32 s{s_wave}, s{s_wave}, 8")
        dump_stamps(6)
    a("s_endpgm")
    a.label("L_final")
    R = v_V
    for u in range(1, 4):
        a(f"ds_read_b64 {vr(R+2*u,2)}, v{v_t} offset:{512*u}")
    N0, N1 = v_VD, v_VD + 1
    a(f"s_cmp_eq_u32 s{s_chunk}, {CONS}")
    a("s_cbranch_scc1 L_consumer")
    a(f"s_lshl_b32 s{s_wsoff}, s{s_head}, 13")
    a(f"v_lshlrev_b32 v{v_t}, 4, v{v_lane}")
    a(f"s_lshl_b32 s{s_t0}, s{s_chunk}, 10")
    a(f"s_add_u32 s{s_wsoff}, s{s_wsoff}, s{s_t0}")
    a(f"s_add_u32 s{s_t1}, s{s_wsoff}, {WS_B}")
    G = R + 16
    a(f"v_mov_b32 v{G+2}, s{s_non}")
    a(f"v_mov_b32 v{G+3}, s{s_non+1}")
    a("s_waitcnt lgkmcnt(0)")
    a(f"v_pk_add_f32 {vr(N0,2)}, {vr(N0,2)}, {vr(R+2,2)}")
    a(f"v_pk_add_f32 {vr(R+4,2)}, {vr(R+4,2)}, {vr(R+6,2)}")
    a(f"v_pk_add_f32 {vr(G,2)}, {vr(N0,2)}, {vr(R+4,2)}")
    if DUAL: a(f"buffer_store_dwordx4 {vr(G,4)}, v{v_t}, {sr(S_WS,4)}, s{s_wsoff} offen")
    a(f"buffer_store_dwordx4 {vr(G,4)}, v{v_t}, {sr(S_WS,4)}, s{s_t1} offen sc1")
    if DIAG:
        stamp(6)
        a(f"s_add_u32 s{s_wave}, s{s_wave}, 8")
        dump_stamps(7)
    a("s_endpgm")
    a.label("L_consumer")
    a(f"v_lshlrev_b32 v{v_t}, 3, v{v_lane}")
    a(f"v_add_u32 v{v_t}, {LDS_G}, v{v_t}")
    for i in range(7):
        a(f"ds_read_b64 {vr(R+8+2*i,2)}, v{v_t} offset:{512*i}")
    a(f"v_mov_b32 v{v_r+2}, {LDS_RDEN}")
    a(f"ds_read_b32 v{v_r+3}, v{v_r+2}")
    a(f"v_and_b32 v{v_t}, 1, v{v_g}")
    a(f"v_lshlrev_b32 v{v_t}, 1, v{v_t}")
    a(f"v_lshrrev_b32 v{v_r+1}, 1, v{v_g}")
    a(f"v_add_u32 v{v_t}, v{v_t}, v{v_r+1}")
    a(f"v_lshl_add_u32 v{v_t}, v{v_n}, 2, v{v_t}")
    a(f"v_lshlrev_b32 v{v_t}, 2, v{v_t}")
    a("s_waitcnt lgkmcnt(0)")
    P = lambda i: vr(R + 2 * i, 2)
    a(f"v_pk_add_f32 {vr(N0,2)}, {vr(N0,2)}, {P(1)}")
    a(f"v_pk_add_f32 {P(2)}, {P(2)}, {P(3)}")
    a(f"v_pk_add_f32 {P(4)}, {P(4)}, {P(5)}")
    a(f"v_pk_add_f32 {P(6)}, {P(6)}, {P(7)}")
    a(f"v_pk_add_f32 {P(8)}, {P(8)}, {P(9)}")
    a(f"v_pk_add_f32 {vr(N0,2)}, {vr(N0,2)}, {P(10)}")
    a(f"v_pk_add_f32 {P(2)}, {P(2)}, {P(4)}")
    a(f"v_pk_add_f32 {P(6)}, {P(6)}, {P(8)}")
    a(f"v_pk_add_f32 {vr(N0,2)}, {vr(N0,2)}, {P(2)}")
    a(f"v_pk_add_f32 {vr(N0,2)}, {vr(N0,2)}, {P(6)}")
    a(f"v_cvt_pk_bf16_f32 v{v_r}, v{N0}, v{N1}")
    a(f"v_lshlrev_b32 v{N0}, 16, v{v_r}")
    a(f"v_and_b32 v{N1}, s{s_mask}, v{v_r}")
    a(f"v_mul_f32 v{N0}, v{N0}, v{v_r+3}")
    a(f"v_mul_f32 v{N1}, v{N1}, v{v_r+3}")
    a(f"v_cvt_pk_bf16_f32 v{v_r}, v{N0}, v{N1}")
    a(f"buffer_store_dword v{v_r}, v{v_t}, {sr(S_OUT,4)}, s{s_qoff} offen {opts.get('outpol','').replace('+',' ')}")
    if DIAG:
        stamp(6)
        a(f"s_add_u32 s{s_wave}, s{s_wave}, 8")
        dump_stamps(7)
    a.label("L_end")
    a("s_endpgm")
    return finish(a, LDS_TOTAL, NVGPR, NSGPR, 768)

if __name__ == "__main__":
    opts = {}; outp = None
    for arg in sys.argv[1:]:
        if "=" in arg:
            k, v = arg.split("=", 1)
            if v in ("0", "1") and k in ("diag",): v = bool(int(v))
            opts[k] = v
        else: outp = arg
    txt = gen(opts)
    if outp: open(outp, "w").write(txt)
    else: sys.stdout.write(txt)
```

```python
import sys, struct

def f32bits(x):
    return struct.unpack("<I", struct.pack("<f", x))[0]

NAME = "standalone__linear_kernel_rfa__decode_kernel"

class Asm:
    def __init__(self):
        self.lines = []
    def __call__(self, s):
        self.lines.append("    " + s)
    def label(self, s):
        self.lines.append(s + ":")
    def c(self, s):
        self.lines.append("    ; " + s)
    def text(self):
        return "\n".join(self.lines) + "\n"

def vr(b, n): return f"v[{b}:{b+n-1}]"
def sr(b, n): return f"s[{b}:{b+n-1}]"

def gen(opts):
    POLK = opts.get("polk", "nt").replace("+", " ").replace("none", "")
    POLV = opts.get("polv", "nt").replace("+", " ").replace("none", "")
    MAP = opts.get("map", "hc")
    DIAG = opts.get("diag", False)
    PRIO = int(opts.get("prio", 0))
    a = Asm()

    LDS_OM, LDS_Q, LDS_K = 0, 16384, 20480
    LDS_X = LDS_K + 131072
    LDS_DEN = LDS_X + 2048
    LDS_RED = LDS_DEN + 256
    LDS_TOTAL = LDS_RED + 2048

    S_K, S_V, S_OM, S_Q, S_OUT, S_DBG, S_WS = 8, 12, 16, 20, 24, 28, 32
    s_head, s_chunk, s_wave = 36, 37, 38
    s_koff, s_t0, s_t1 = 39, 40, 41
    s_scale = 42
    s_log2e = 44
    s_mask = 46
    s_qoff = 47
    s_non = 48
    s_exec = 50
    s_cmp = 52
    s_wsoff = 54
    s_it = 55
    s_rowm = 56
    s_sel0, s_sel1 = 58, 59
    s_step = 60
    s_kl = 61
    NSGPR = 102 if DIAG else 64
    ST0 = 64
    stamp_n = [0]
    def stamp(idx=None):
        if DIAG:
            i = stamp_n[0] if idx is None else idx
            a(f"s_memrealtime s[{ST0+2*i}:{ST0+2*i+1}]")
            stamp_n[0] = i + 1
    def dump_stamps(n):
        if not DIAG: return
        a("s_waitcnt lgkmcnt(0)")
        a("v_mov_b32 v20, 0")
        for i in range(n):
            a(f"v_mov_b32 v21, s{ST0+2*i}")
            a(f"v_cmp_eq_u32 vcc, {i}, v1")
            a("s_nop 1")
            a("v_cndmask_b32 v20, v20, v21, vcc")
        a("s_lshl_b32 s100, s2, 4")
        a(f"s_add_u32 s100, s100, s{s_wave}")
        a("s_lshl_b32 s100, s100, 7")
        a("s_add_u32 s100, s100, 0x80000")
        a("v_lshlrev_b32 v21, 2, v1")
        a("v_cmp_gt_u32 vcc, 16, v1")
        a("s_and_saveexec_b64 s[98:99], vcc")
        a(f"buffer_store_dword v20, v21, {sr(S_WS,4)}, s100 offen")
        a("s_mov_b64 exec, s[98:99]")

    v_lane, v_n, v_g, v_u, v_t = 1, 2, 3, 4, 5
    NVGPR = 168

    a.label(NAME)
    a("s_cmp_ge_u32 s2, 256")
    a("s_cbranch_scc1 L_end")
    stamp(0)
    a(f"s_load_dwordx2 {sr(S_OM,2)}, s[0:1], 24")
    a(f"s_load_dwordx2 {sr(S_K,2)}, s[0:1], 8")
    a(f"s_load_dwordx2 {sr(S_Q,2)}, s[0:1], 0")
    a(f"s_load_dwordx2 {sr(S_V,2)}, s[0:1], 16")
    a(f"s_load_dwordx2 {sr(S_OUT,2)}, s[0:1], 32")
    a(f"s_load_dwordx2 {sr(S_DBG,2)}, s[0:1], 40")
    a(f"s_load_dwordx2 {sr(S_WS,2)}, s[0:1], 48")
    a(f"v_lshrrev_b32 v{v_t}, 6, v0")
    a(f"v_and_b32 v{v_lane}, 63, v0")
    a(f"v_readfirstlane_b32 s{s_wave}, v{v_t}")
    for s, n in ((S_K, 0x2000000), (S_V, 0x2000000), (S_OM, 16384), (S_Q, 8192), (S_OUT, 8192), (S_DBG, 256), (S_WS, 0x100000)):
        a(f"s_mov_b32 s{s+2}, 0x{n:x}")
        a(f"s_mov_b32 s{s+3}, 0x00020000")
    if MAP == "hc":
        a(f"s_and_b32 s{s_head}, s2, 31")
        a(f"s_lshr_b32 s{s_chunk}, s2, 5")
    else:
        a(f"s_lshr_b32 s{s_head}, s2, 3")
        a(f"s_and_b32 s{s_chunk}, s2, 7")
    a(f"v_and_b32 v{v_n}, 15, v0")
    a(f"v_lshrrev_b32 v{v_g}, 4, v{v_lane}")
    a(f"s_lshl_b32 s{s_koff}, s{s_head}, 20")
    a(f"s_lshl_b32 s{s_t0}, s{s_chunk}, 17")
    a(f"s_add_u32 s{s_koff}, s{s_koff}, s{s_t0}")
    a(f"s_lshl_b32 s{s_qoff}, s{s_head}, 8")
    a(f"s_mov_b32 s{s_mask}, 0xffff0000")
    a(f"s_cmp_ge_u32 s{s_wave}, 8")
    a("s_cbranch_scc1 L_vwave")

    v_dma = 6
    v_a = 10
    v_qd = 14
    v_nsq, v_sq = 16, 17
    v_X, v_X2 = 18, 19
    v_c3 = 20
    v_c0 = 24
    v_D = 28
    v_A = 32
    v_B = 96
    v_acc = 112
    v_pq = 128
    v_P = 136
    v_tmp = 144
    NT = 12
    a(f"v_xor_b32 v{v_u}, v{v_n}, v{v_g}")
    a(f"v_lshlrev_b32 v{v_u}, 4, v{v_u}")
    a(f"v_lshl_add_u32 v{v_dma}, v{v_g}, 8, v{v_u}")
    for jj in range(1, 4):
        a(f"v_xor_b32 v{v_dma+jj}, {64*jj}, v{v_dma}")
    a(f"s_lshl_b32 s{s_t0}, s{s_wave}, 14")
    a(f"s_add_u32 s{s_koff}, s{s_koff}, s{s_t0}")
    a(f"s_add_u32 s{s_kl}, s{s_t0}, {LDS_K}")
    a(f"s_lshl_b32 s{s_t1}, s{s_wave}, 6")
    a(f"v_xor_b32 v{v_qd}, s{s_t1}, v{v_u}")
    a(f"s_lshl_b32 s{s_t0}, s{s_wave}, 12")
    a(f"s_mov_b32 m0, s{s_t0}")
    if PRIO: a(f"s_setprio {PRIO}")
    def kdma():
        for T in range(4):
            a(f"s_add_u32 s{s_t1}, s{s_koff}, {4096*T}")
            a(f"s_add_u32 m0, s{s_kl}, {4096*T}")
            a("s_nop 0")
            for jj in range(4):
                a(f"buffer_load_dwordx4 v{v_dma+jj}, {sr(S_K,4)}, s{s_t1} offen offset:{1024*jj} {POLK} lds")
    a(f"s_cmp_ge_u32 s{s_wave}, 4")
    a("s_cbranch_scc1 L_k_late")
    a("s_waitcnt lgkmcnt(0)")
    stamp(1)
    for jj in range(4):
        a(f"buffer_load_dwordx4 v{v_dma+jj}, {sr(S_OM,4)}, s{s_t0} offen offset:{1024*jj} lds")
    a(f"s_lshl_b32 s{s_t0}, s{s_wave}, 10")
    a(f"s_add_u32 m0, s{s_t0}, {LDS_Q}")
    a("s_nop 0")
    a(f"buffer_load_dwordx4 v{v_qd}, {sr(S_Q,4)}, s{s_qoff} offen lds")
    kdma()
    stamp(2)
    a("s_waitcnt vmcnt(16)")
    a("s_barrier")
    a("s_branch L_k_go")
    a.label("L_k_late")
    a("s_waitcnt lgkmcnt(0)")
    stamp(1)
    a("s_barrier")
    kdma()
    stamp(2)
    a.label("L_k_go")
    stamp(3)
    if DIAG: a(f"s_memtime s[{ST0+14}:{ST0+15}]")
    a(f"v_lshl_add_u32 v{v_a}, v{v_n}, 8, v{v_u}")
    for t in range(1, 4):
        a(f"v_xor_b32 v{v_a+t}, {64*t}, v{v_a}")
    for mt in range(4):
        for t in range(4):
            a(f"ds_read_b128 {vr(v_A+16*mt+4*t,4)}, v{v_a+t} offset:{LDS_OM+4096*mt}")
    for t in range(4):
        a(f"v_add_u32 v{v_a+t}, {LDS_Q}, v{v_a+t}")
    sc = f32bits(float(128) ** -0.25)
    a(f"s_mov_b32 s{s_scale}, 0x{sc:08x}")
    a(f"s_mov_b32 s{s_scale+1}, 0x{sc:08x}")
    l2e = f32bits(1.4426950408889634)
    a(f"s_mov_b32 s{s_log2e}, 0x{l2e:08x}")
    a(f"s_mov_b32 s{s_log2e+1}, 0x{l2e:08x}")
    a(f"s_mov_b32 s{s_sel0}, 0x00003f80")
    a(f"s_mov_b32 s{s_sel1}, 0x3f800000")
    a(f"v_mov_b32 v{v_c3}, 0x{f32bits(-3.0):08x}")
    a(f"v_mov_b32 v{v_c3+1}, 0x{f32bits(-3.0):08x}")
    a(f"s_sub_u32 s{s_step}, s{s_kl}, {LDS_Q}")
    a(f"s_mov_b32 s{s_it}, 0")
    a(f"s_mov_b64 {sr(s_rowm,2)}, 0xffff")
    a(f"v_mov_b32 v{v_X}, 0")
    for i in range(4):
        a(f"v_mov_b32 v{v_c0+i}, 0")
    for i in range(8):
        a(f"v_mov_b32 v{v_pq+i}, 0")
    a("s_branch L_go")
    a.label("L_tile")
    a(f"s_cmp_ge_u32 s{s_it}, 3")
    a("s_cbranch_scc1 L_w34")
    a(f"s_cmp_eq_u32 s{s_it}, 1")
    a("s_cbranch_scc1 L_w1")
    a("s_waitcnt vmcnt(8)")
    a("s_branch L_go")
    a.label("L_w1")
    a("s_waitcnt vmcnt(12)")
    a("s_branch L_go")
    a.label("L_w34")
    a(f"s_cmp_eq_u32 s{s_it}, 3")
    a("s_cbranch_scc1 L_w3")
    a("s_waitcnt vmcnt(0)")
    a("s_branch L_go")
    a.label("L_w3")
    a("s_waitcnt vmcnt(4)")
    a.label("L_go")
    for t in range(4):
        a(f"ds_read_b128 {vr(v_B+4*t,4)}, v{v_a+t}")
    for t in range(4):
        a(f"v_add_u32 v{v_a+t}, s{s_step}, v{v_a+t}")
    a(f"s_movk_i32 s{s_step}, 4096")
    a("s_waitcnt lgkmcnt(0)")
    for i0 in range(0, 16, 4):
        idx = range(i0, i0 + 4)
        T = lambda i: v_tmp + 2 * (i % NT)
        for i in idx: a(f"v_lshlrev_b32 v{T(i)}, 16, v{v_B+i}")
        for i in idx: a(f"v_and_b32 v{T(i)+1}, s{s_mask}, v{v_B+i}")
        for i in idx: a(f"v_pk_mul_f32 {vr(T(i),2)}, {vr(T(i),2)}, {sr(s_scale,2)}")
        for i in idx: a(f"v_cvt_pk_bf16_f32 v{v_B+i}, v{T(i)}, v{T(i)+1}")
        for i in idx:
            if i == 0: a(f"v_dot2_f32_bf16 v{v_sq}, v{v_B+i}, v{v_B+i}, 0")
            else: a(f"v_dot2c_f32_bf16 v{v_sq}, v{v_B+i}, v{v_B+i}")
    def mf(t, mt):
        c = "0" if t == 0 else vr(v_acc+4*mt, 4)
        a(f"v_mfma_f32_16x16x32_bf16 {vr(v_acc+4*mt,4)}, {vr(v_A+16*mt+4*t,4)}, {vr(v_B+4*t,4)}, {c}")
    for mt in range(4): mf(0, mt)
    a(f"v_mov_b32 v{v_t}, v{v_sq}")
    mf(1, 0)
    mf(1, 1)
    a(f"v_permlane32_swap_b32 v{v_sq}, v{v_t}")
    mf(1, 2)
    a(f"v_add_f32 v{v_sq}, v{v_sq}, v{v_t}")
    mf(1, 3)
    a(f"v_mov_b32 v{v_t}, v{v_sq}")
    mf(2, 0)
    mf(2, 1)
    a(f"v_permlane16_swap_b32 v{v_sq}, v{v_t}")
    mf(2, 2)
    a(f"v_add_f32 v{v_sq}, v{v_sq}, v{v_t}")
    mf(2, 3)
    a(f"v_cvt_pk_bf16_f32 v{v_sq}, v{v_sq}, v{v_sq}")
    mf(3, 0)
    a(f"v_and_b32 v{v_sq}, s{s_mask}, v{v_sq}")
    mf(3, 1)
    a(f"v_mul_f32 v{v_nsq}, -0.5, v{v_sq}")
    mf(3, 2)
    mf(3, 3)
    a("s_nop 4")
    X0 = lambda p: v_acc + 2 * p
    for p in range(8): a(f"v_cvt_pk_bf16_f32 v{X0(p)}, v{X0(p)}, v{X0(p)+1}")
    for p in range(8): a(f"v_dot2_f32_bf16 v{X0(p)+1}, v{X0(p)}, s{s_sel1}, v{v_nsq}")
    for p in range(8): a(f"v_dot2_f32_bf16 v{X0(p)}, v{X0(p)}, s{s_sel0}, v{v_nsq}")
    for p in range(8): a(f"v_cvt_pk_bf16_f32 v{X0(p)}, v{X0(p)}, v{X0(p)+1}")
    for p in range(8):
        a(f"v_and_b32 v{X0(p)+1}, s{s_mask}, v{X0(p)}")
        a(f"v_lshlrev_b32 v{X0(p)}, 16, v{X0(p)}")
    for p in range(8): a(f"v_pk_fma_f32 {vr(X0(p),2)}, {vr(X0(p),2)}, {sr(s_log2e,2)}, {vr(v_c3,2)}")
    for p in range(8):
        a(f"v_exp_f32 v{X0(p)}, v{X0(p)}")
        a(f"v_exp_f32 v{X0(p)+1}, v{X0(p)+1}")
    for p in range(8): a(f"v_cvt_pk_bf16_f32 v{v_P+p}, v{X0(p)}, v{X0(p)+1}")
    a(f"s_cmp_eq_u32 s{s_it}, 0")
    a("s_cbranch_scc1 L_qfin")
    a("s_nop 0")
    a(f"v_mfma_f32_16x16x32_bf16 {vr(v_D,4)}, {vr(v_pq,4)}, {vr(v_P,4)}, {vr(v_c0,4)}")
    a(f"v_mfma_f32_16x16x32_bf16 {vr(v_D,4)}, {vr(v_pq+4,4)}, {vr(v_P+4,4)}, {vr(v_D,4)}")
    a(f"s_add_u32 s{s_it}, s{s_it}, 1")
    a("s_nop 6")
    a(f"v_cndmask_b32 v{v_X}, v{v_X}, v{v_D}, {sr(s_rowm,2)}")
    a(f"s_lshl_b64 {sr(s_rowm,2)}, {sr(s_rowm,2)}, 16")
    if DIAG:
        pass
    a(f"s_cmp_le_u32 s{s_it}, 4")
    a("s_cbranch_scc1 L_tile")
    a("s_branch L_kdone")
    a.label("L_qfin")
    a(f"v_mov_b32 v{v_tmp}, 0x{f32bits(1e-6):08x}")
    a(f"v_mov_b32 v{v_tmp+1}, 0x{f32bits(1e-6):08x}")
    for i in range(4): a(f"v_mov_b32 v{v_tmp+4+i}, 0x3f803f80")
    for p in range(8): a(f"v_pk_add_f32 {vr(X0(p),2)}, {vr(X0(p),2)}, {vr(v_tmp,2)}")
    for p in range(8): a(f"v_cvt_pk_bf16_f32 v{v_pq+p}, v{X0(p)}, v{X0(p)+1}")
    a("s_nop 1")
    a(f"v_mfma_f32_16x16x32_bf16 {vr(v_D,4)}, {vr(v_pq,4)}, {vr(v_tmp+4,4)}, 0")
    a(f"v_mfma_f32_16x16x32_bf16 {vr(v_D,4)}, {vr(v_pq+4,4)}, {vr(v_tmp+4,4)}, {vr(v_D,4)}")
    a(f"s_mov_b32 s{s_it}, 1")
    a("s_nop 6")
    for i in range(4): a(f"v_mul_f32 v{v_c0+i}, v{v_tmp}, v{v_D+i}")
    stamp(4)
    a("s_branch L_tile")
    a.label("L_kdone")
    stamp(5)
    if DIAG: a(f"s_memtime s[{ST0+16}:{ST0+17}]")
    a(f"v_cvt_pk_bf16_f32 v{v_t}, v{v_X}, v{v_X}")
    a(f"v_and_b32 v{v_t}, s{s_mask}, v{v_t}")
    a(f"v_sub_f32 v{v_X2}, v{v_X}, v{v_t}")
    a(f"v_cvt_pk_bf16_f32 v{v_X2}, v{v_X2}, v{v_t}")
    a(f"s_lshl_b32 s{s_t0}, s{s_wave}, 8")
    a(f"s_add_u32 s{s_t0}, s{s_t0}, {LDS_X}")
    a(f"v_lshlrev_b32 v{v_t}, 2, v{v_lane}")
    a(f"v_add_u32 v{v_t}, s{s_t0}, v{v_t}")
    a(f"ds_write_b32 v{v_t}, v{v_X2}")
    d = v_tmp
    a(f"v_add_f32_dpp v{d}, v{v_X}, v{v_X} quad_perm:[1,0,3,2] row_mask:0xf bank_mask:0xf")
    a("s_nop 1")
    a(f"v_add_f32_dpp v{d}, v{d}, v{d} quad_perm:[2,3,0,1] row_mask:0xf bank_mask:0xf")
    a("s_nop 1")
    a(f"v_add_f32_dpp v{d}, v{d}, v{d} row_half_mirror row_mask:0xf bank_mask:0xf")
    a("s_nop 1")
    a(f"v_add_f32_dpp v{d}, v{d}, v{d} row_mirror row_mask:0xf bank_mask:0xf")
    a(f"v_mov_b32 v{d+1}, v{d}")
    a("s_nop 1")
    a(f"v_permlane32_swap_b32 v{d}, v{d+1}")
    a("s_nop 0")
    a(f"v_add_f32 v{d}, v{d}, v{d+1}")
    a(f"v_mov_b32 v{d+1}, v{d}")
    a("s_nop 1")
    a(f"v_permlane16_swap_b32 v{d}, v{d+1}")
    a("s_nop 0")
    a(f"v_add_f32 v{d}, v{d}, v{d+1}")
    a(f"s_lshl_b32 s{s_t0}, s{s_wave}, 2")
    a(f"s_add_u32 s{s_t0}, s{s_t0}, {LDS_DEN}")
    a(f"v_mov_b32 v{d+1}, s{s_t0}")
    a(f"ds_write_b32 v{d+1}, v{d}")
    a("s_waitcnt lgkmcnt(0)")
    a("s_barrier")
    stamp(6)
    dump_stamps(9)
    a("s_endpgm")

    a.label("L_vwave")
    v_vo = 6
    v_sel = 8
    v_xa = 12
    v_wb = 14
    v_VA = 16
    v_VD = 24
    v_non = 28
    v_V = 32
    v_r = 160
    a(f"s_sub_u32 s{s_wave}, s{s_wave}, 8")
    a(f"s_lshl_b32 s{s_t0}, s{s_wave}, 15")
    a(f"s_add_u32 s{s_koff}, s{s_koff}, s{s_t0}")
    a(f"v_lshlrev_b32 v{v_vo}, 4, v{v_lane}")
    a(f"s_cmp_lg_u32 s{s_wave}, 0")
    a("s_cbranch_scc1 L_v_nononce")
    a(f"s_memrealtime {sr(s_non,2)}")
    a(f"v_mov_b32 v{v_non+2}, 0")
    a(f"v_mov_b32 v{v_non+3}, 0")
    a(f"s_lshl_b32 s{s_t0}, s{s_head}, 3")
    a(f"v_mov_b32 v{v_t}, s{s_t0}")
    a("s_waitcnt lgkmcnt(0)")
    a(f"s_or_b32 s{s_non}, s{s_non}, 1")
    a(f"v_mov_b32 v{v_non}, s{s_non}")
    a(f"v_mov_b32 v{v_non+1}, s{s_non+1}")
    a("s_mov_b64 exec, 1")
    a(f"buffer_atomic_cmpswap_x2 {vr(v_non,4)}, v{v_t}, {sr(S_DBG,4)}, 0 offen sc0")
    a("s_mov_b64 exec, -1")
    a.label("L_v_nononce")
    a("s_waitcnt lgkmcnt(0)")
    stamp(1)
    a("s_barrier")
    for j4 in range(8):
        a(f"s_add_u32 s{s_t1}, s{s_koff}, {4096*j4}")
        for jj in range(4):
            j = 4 * j4 + jj
            a(f"buffer_load_dwordx4 {vr(v_V+4*j,4)}, v{v_vo}, {sr(S_V,4)}, s{s_t1} offen offset:{1024*jj} {POLV}")
    stamp(2)
    t0, t1, t2 = v_r, v_r + 1, v_r + 2
    a(f"v_mov_b32 v{t0}, 0x0302")
    a(f"v_mov_b32 v{t1}, 0x0100")
    a(f"v_cmp_gt_u32 vcc, 8, v{v_n}")
    a("s_nop 1")
    a(f"v_cndmask_b32 v{t0}, v{t1}, v{t0}, vcc")
    a(f"v_lshlrev_b32 v{t1}, 16, v{t0}")
    a(f"v_or_b32 v{t1}, 0x0c0c, v{t1}")
    a(f"v_or_b32 v{t0}, 0x0c0c0000, v{t0}")
    a(f"v_and_b32 v{t2}, 1, v{v_n}")
    a(f"v_cmp_eq_u32 vcc, 1, v{t2}")
    a("s_nop 1")
    a(f"v_cndmask_b32 v{t0}, v{t0}, v{t1}, vcc")
    a(f"v_bfe_u32 v{t2}, v{v_n}, 1, 2")
    a(f"v_mov_b32 v{t1}, 0x0c0c0c0c")
    for k in range(4):
        a(f"v_cmp_eq_u32 vcc, {k}, v{t2}")
        a("s_nop 1")
        a(f"v_cndmask_b32 v{v_sel+k}, v{t1}, v{t0}, vcc")
    a(f"s_lshl_b32 s{s_t0}, s{s_wave}, 9")
    a(f"s_add_u32 s{s_t0}, s{s_t0}, {LDS_X}")
    a(f"v_lshl_add_u32 v{t2}, v{v_n}, 2, v{v_g}")
    a(f"v_lshlrev_b32 v{t2}, 2, v{t2}")
    a(f"v_add_u32 v{t2}, s{s_t0}, v{t2}")
    a(f"s_lshl_b32 s{s_t0}, s{s_wave}, 9")
    a(f"s_add_u32 s{s_t0}, s{s_t0}, {LDS_RED}")
    a(f"v_lshlrev_b32 v{v_t}, 3, v{v_lane}")
    a(f"v_add_u32 v{v_t}, s{s_t0}, v{v_t}")
    a("s_barrier")
    stamp(3)
    a(f"ds_read_b32 v{v_xa}, v{t2}")
    a(f"ds_read_b32 v{v_xa+1}, v{t2} offset:256")
    a("s_waitcnt lgkmcnt(0)")
    def buildA(j):
        wb = v_wb + (j % 2)
        A = v_VA + 4 * (j % 2)
        a(f"v_mov_b32_dpp v{wb}, v{v_xa + j // 16} row_newbcast:{j % 16} row_mask:0xf bank_mask:0xf")
        for k in range(4):
            a(f"v_perm_b32 v{A+k}, v{wb}, v{wb}, v{v_sel+k}")
    buildA(0)
    for j in range(32):
        if j + 1 < 32: buildA(j + 1)
        else: a("s_nop 1")
        a(f"s_waitcnt vmcnt({31-j})")
        c = "0" if j == 0 else vr(v_VD, 4)
        a(f"v_mfma_f32_16x16x32_bf16 {vr(v_VD,4)}, {vr(v_VA+4*(j%2),4)}, {vr(v_V+4*j,4)}, {c}")
    stamp(4)
    a("s_nop 7")
    a(f"v_permlane32_swap_b32 v{v_VD}, v{v_VD+2}")
    a(f"v_permlane32_swap_b32 v{v_VD+1}, v{v_VD+3}")
    a("s_nop 0")
    a(f"v_add_f32 v{v_VD}, v{v_VD}, v{v_VD+2}")
    a(f"v_add_f32 v{v_VD+1}, v{v_VD+1}, v{v_VD+3}")
    a(f"ds_write_b64 v{v_t}, {vr(v_VD,2)}")
    a("s_waitcnt lgkmcnt(0)")
    a("s_barrier")
    stamp(5)
    a(f"s_cmp_eq_u32 s{s_wave}, 0")
    a("s_cbranch_scc1 L_final")
    if DIAG:
        a(f"s_add_u32 s{s_wave}, s{s_wave}, 8")
        dump_stamps(6)
    a("s_endpgm")
    a.label("L_final")
    R = v_V
    for u in range(1, 4):
        a(f"ds_read_b64 {vr(R+2*u,2)}, v{v_t} offset:{512*u}")
    a(f"v_mov_b32 v{v_r}, {LDS_DEN}")
    a(f"ds_read_b128 {vr(R+8,4)}, v{v_r}")
    a(f"ds_read_b128 {vr(R+12,4)}, v{v_r} offset:16")
    N0, N1, DEN = v_VD, v_VD + 1, R + 8
    a(f"s_lshl_b32 s{s_wsoff}, s{s_head}, 14")
    a(f"v_lshlrev_b32 v{v_t}, 4, v{v_lane}")
    a(f"v_readfirstlane_b32 s{s_t0}, v{v_non}")
    a(f"v_readfirstlane_b32 s{s_t1}, v{v_non+1}")
    a("s_nop 3")
    a(f"s_or_b32 s{s_cmp}, s{s_t0}, s{s_t1}")
    a(f"s_cmp_eq_u32 s{s_cmp}, 0")
    a(f"s_cselect_b32 s{s_non}, s{s_non}, s{s_t0}")
    a(f"s_cselect_b32 s{s_non+1}, s{s_non+1}, s{s_t1}")
    a("s_waitcnt lgkmcnt(0)")
    for u in range(1, 4):
        a(f"v_add_f32 v{N0}, v{N0}, v{R+2*u}")
        a(f"v_add_f32 v{N1}, v{N1}, v{R+2*u+1}")
    for i in range(1, 8):
        a(f"v_add_f32 v{DEN}, v{DEN}, v{R+8+i}")
    a(f"s_cmp_eq_u32 s{s_chunk}, 0")
    a("s_cbranch_scc1 L_consumer")
    a(f"s_lshl_b32 s{s_t0}, s{s_chunk}, 11")
    a(f"s_add_u32 s{s_wsoff}, s{s_wsoff}, s{s_t0}")
    G = R + 16
    a(f"v_mov_b32 v{G}, v{N0}")
    a(f"v_mov_b32 v{G+1}, v{N1}")
    a(f"v_mov_b32 v{G+2}, s{s_non}")
    a(f"v_mov_b32 v{G+3}, s{s_non+1}")
    a(f"v_mov_b32 v{G+4}, v{DEN}")
    a(f"v_mov_b32 v{G+5}, v{DEN}")
    a(f"v_mov_b32 v{G+6}, s{s_non}")
    a(f"v_mov_b32 v{G+7}, s{s_non+1}")
    a(f"buffer_store_dwordx4 {vr(G,4)}, v{v_t}, {sr(S_WS,4)}, s{s_wsoff} offen sc1")
    a("s_mov_b64 exec, 1")
    a(f"buffer_store_dwordx4 {vr(G+4,4)}, v{v_t}, {sr(S_WS,4)}, s{s_wsoff} offen offset:1024 sc1")
    if DIAG:
        a("s_mov_b64 exec, -1")
        stamp(6)
        a(f"s_add_u32 s{s_wave}, s{s_wave}, 8")
        dump_stamps(7)
    a("s_endpgm")
    a.label("L_consumer")
    a(f"v_mov_b32 v{v_r}, 1024")
    Q = R + 32
    a.label("L_poll")
    for c in range(1, 8):
        a(f"s_add_u32 s{s_t0}, s{s_wsoff}, {2048*c}")
        a(f"buffer_load_dwordx4 {vr(Q+8*c,4)}, v{v_t}, {sr(S_WS,4)}, s{s_t0} offen sc1")
        a(f"buffer_load_dwordx4 {vr(Q+8*c+4,4)}, v{v_r}, {sr(S_WS,4)}, s{s_t0} offen sc1")
    a("s_waitcnt vmcnt(0)")
    a(f"v_mov_b32 v{v_r+1}, 0")
    for c in range(1, 8):
        for o in (2, 6):
            a(f"v_xor_b32 v{v_r+2}, s{s_non}, v{Q+8*c+o}")
            a(f"v_xor_b32 v{v_r+3}, s{s_non+1}, v{Q+8*c+o+1}")
            a(f"v_or3_b32 v{v_r+1}, v{v_r+1}, v{v_r+2}, v{v_r+3}")
    a(f"v_cmp_ne_u32 vcc, 0, v{v_r+1}")
    a("s_nop 4")
    a("s_cbranch_vccnz L_poll")
    for c in range(1, 8):
        a(f"v_add_f32 v{N0}, v{N0}, v{Q+8*c}")
        a(f"v_add_f32 v{N1}, v{N1}, v{Q+8*c+1}")
        a(f"v_add_f32 v{DEN}, v{DEN}, v{Q+8*c+4}")
    a(f"v_cvt_pk_bf16_f32 v{v_r}, v{N0}, v{N1}")
    a(f"v_lshlrev_b32 v{N0}, 16, v{v_r}")
    a(f"v_and_b32 v{N1}, s{s_mask}, v{v_r}")
    a(f"v_cvt_pk_bf16_f32 v{DEN}, v{DEN}, v{DEN}")
    a(f"v_and_b32 v{DEN}, s{s_mask}, v{DEN}")
    a(f"v_add_f32 v{DEN}, 0x{f32bits(1e-6):08x}, v{DEN}")
    a(f"v_cvt_pk_bf16_f32 v{DEN}, v{DEN}, v{DEN}")
    a(f"v_and_b32 v{DEN}, s{s_mask}, v{DEN}")
    a(f"v_rcp_f32 v{DEN}, v{DEN}")
    a("s_nop 0")
    a(f"v_mul_f32 v{N0}, v{N0}, v{DEN}")
    a(f"v_mul_f32 v{N1}, v{N1}, v{DEN}")
    a(f"v_cvt_pk_bf16_f32 v{v_r}, v{N0}, v{N1}")
    a(f"v_and_b32 v{v_t}, 1, v{v_g}")
    a(f"v_lshlrev_b32 v{v_t}, 1, v{v_t}")
    a(f"v_lshrrev_b32 v{v_r+1}, 1, v{v_g}")
    a(f"v_add_u32 v{v_t}, v{v_t}, v{v_r+1}")
    a(f"v_lshl_add_u32 v{v_t}, v{v_n}, 2, v{v_t}")
    a(f"v_lshlrev_b32 v{v_t}, 2, v{v_t}")
    a(f"buffer_store_dword v{v_r}, v{v_t}, {sr(S_OUT,4)}, s{s_qoff} offen {opts.get('outpol','').replace('+',' ')}")
    if opts.get("probe"):
        a("s_memrealtime s[56:57]")
        a("s_waitcnt lgkmcnt(0)")
        a(f"s_sub_u32 s58, s56, s{s_non}")
        a("s_lshl_b32 s58, s58, 2")
        a("s_add_u32 s58, s58, s56")
        a.label("L_spin")
        a("s_sleep 8")
        a("s_memrealtime s[56:57]")
        a("s_waitcnt lgkmcnt(0)")
        a("s_sub_u32 s59, s56, s58")
        a("s_cmp_lt_i32 s59, 0")
        a("s_cbranch_scc1 L_spin")
    if opts.get("dbgspan"):
        a("s_memrealtime s[56:57]")
        a(f"s_lshl_b32 s{s_t0}, s{s_head}, 3")
        a(f"s_add_u32 s{s_t0}, s{s_t0}, 4")
        a("s_waitcnt lgkmcnt(0)")
        a("v_mov_b32 v20, s56")
        a(f"v_mov_b32 v21, s{s_t0}")
        a("s_mov_b64 exec, 1")
        a(f"buffer_store_dword v20, v21, {sr(S_DBG,4)}, 0 offen")
    if DIAG:
        stamp(6)
        a(f"s_add_u32 s{s_wave}, s{s_wave}, 8")
        dump_stamps(7)
    a.label("L_end")
    a("s_endpgm")
    return finish(a, LDS_TOTAL, NVGPR, NSGPR, 768)

DESCR = """;
;              with a diagonal (hi,lo) weight operand, LDS reduction.
; Cross-workgroup reduction: partial sums go to d_ws as 16-byte granules {v0, v1, tag64}; the tag is a per-head,
"""

def finish(a, LDS_TOTAL, NVGPR, NSGPR, BLOCK):
    ref = open("standalone__linear_kernel_rfa__decode.s.ref").read().splitlines()
    stop = next(i for i, l in enumerate(ref) if not l.startswith(";"))
    head = [l for l in ref[:stop] if "@launch" not in l and "Override" not in l and "grid=ceil" not in l]
    out = "\n".join(head) + f"\n; @launch grid=(256,1,1) block=({BLOCK},1,1) lds={LDS_TOTAL}\n" + DESCR
    out += '.amdgcn_target "amdgcn-amd-amdhsa--gfx950"\n.text\n'
    out += f".globl {NAME}\n.p2align 8\n.type {NAME},@function\n"
    out += a.text()
    out += f""".section .rodata,"a"
.p2align 6
.amdhsa_kernel {NAME}
  .amdhsa_next_free_vgpr {NVGPR}
  .amdhsa_next_free_sgpr {NSGPR}
  .amdhsa_accum_offset {NVGPR}
  .amdhsa_group_segment_fixed_size 0
  .amdhsa_kernarg_size 56
  .amdhsa_user_sgpr_count 2
  .amdhsa_user_sgpr_kernarg_segment_ptr 1
  .amdhsa_system_sgpr_workgroup_id_x 1
.end_amdhsa_kernel
"""
    return out

if __name__ == "__main__":
    opts = {}
    outp = None
    for arg in sys.argv[1:]:
        if "=" in arg:
            k, v = arg.split("=", 1)
            if v in ("0", "1") and k in ("diag",): v = bool(int(v))
            opts[k] = v
        else:
            outp = arg
    txt = gen(opts)
    if outp: open(outp, "w").write(txt)
    else: sys.stdout.write(txt)
```

```python
import sys, struct
from gen2 import Asm, vr, sr, f32bits, finish, NAME

def gen(opts):
    POLK = opts.get("polk", "nt").replace("+", " ").replace("none", "")
    POLV = opts.get("polv", "nt").replace("+", " ").replace("none", "")
    MAP = opts.get("map", "ch")
    DIAG = opts.get("diag", False)
    PRIO = int(opts.get("prio", 0))
    AHEAD = int(opts.get("ahead", 1))
    VPRIO = int(opts.get("vprio", 3))
    REST = int(opts.get("rest", 1))
    CONS = int(opts.get("cons", 5))
    DUAL = int(opts.get("dual", 0))
    SLEEP = int(opts.get("sleep", 0))
    VP2 = int(opts.get("vp2", 3))
    PIPE = int(opts.get("pipe", 0))
    PSLEEP = int(opts.get("psleep", 3))
    DRY = int(opts.get("dry", 0))
    PUBPOL = opts.get("pubpol", "sc1").replace("+", " ").replace("none", "")
    POLLPOL = opts.get("pollpol", "sc1").replace("+", " ").replace("none", "")
    EARLY = int(opts.get("early", 0))
    assert EARLY % 4 == 0 and EARLY <= 12
    a = Asm()

    LDS_OM, LDS_K = 0, 16384
    LDS_X = LDS_K + 131072
    LDS_DEN = LDS_X + 2048
    LDS_FLAG = LDS_DEN + 32
    LDS_PQ = LDS_DEN + 64
    LDS_RED = LDS_DEN + 256
    LDS_Q = LDS_RED + 2048
    LDS_G = LDS_Q + 1024
    LDS_NON = LDS_DEN + 48
    LDS_RDEN = LDS_DEN + 56
    LDS_TOTAL = LDS_G + 4096
    WS_A, WS_B, WS_DEN = 0, 0x100000, 0x80000

    S_K, S_V, S_OM, S_Q, S_OUT, S_DBG, S_WS = 8, 12, 16, 20, 24, 28, 32
    s_head, s_chunk, s_wave = 36, 37, 38
    s_koff, s_t0, s_t1 = 39, 40, 41
    s_scale = 42; s_log2e = 44; s_mask = 46; s_qoff = 47
    s_non = 48; s_exec = 50; s_cmp = 52; s_wsoff = 54; s_it = 55; s_rowm = 56
    s_sel0, s_sel1 = 58, 59
    s_kl = 61; s_knext = 62; s_lnext = 63
    NSGPR = 102 if DIAG else 64
    ST0 = 64
    def stamp(i):
        if DIAG: a(f"s_memrealtime s[{ST0+2*i}:{ST0+2*i+1}]")
    def dump_stamps(n):
        if not DIAG: return
        a("s_waitcnt lgkmcnt(0)")
        a("v_mov_b32 v20, 0")
        for i in range(n):
            a(f"v_mov_b32 v21, s{ST0+2*i}")
            a(f"v_cmp_eq_u32 vcc, {i}, v1")
            a("s_nop 1")
            a("v_cndmask_b32 v20, v20, v21, vcc")
        a("s_lshl_b32 s100, s2, 4")
        a(f"s_add_u32 s100, s100, s{s_wave}")
        a("s_lshl_b32 s100, s100, 7")
        a("s_add_u32 s100, s100, 0x400000")
        a("v_lshlrev_b32 v21, 2, v1")
        a("v_cmp_gt_u32 vcc, 16, v1")
        a("s_and_saveexec_b64 s[98:99], vcc")
        a(f"buffer_store_dword v20, v21, {sr(S_WS,4)}, s100 offen")
        a("s_mov_b64 exec, s[98:99]")

    v_lane, v_n, v_g, v_u, v_t = 1, 2, 3, 4, 5
    NVGPR = 168
    sc = f32bits(float(128) ** -0.25)
    l2e = f32bits(1.4426950408889634)

    def consts():
        a(f"s_mov_b32 s{s_scale}, 0x{sc:08x}")
        a(f"s_mov_b32 s{s_scale+1}, 0x{sc:08x}")
        a(f"s_mov_b32 s{s_log2e}, 0x{l2e:08x}")
        a(f"s_mov_b32 s{s_log2e+1}, 0x{l2e:08x}")
        a(f"s_mov_b32 s{s_sel0}, 0x00003f80")
        a(f"s_mov_b32 s{s_sel1}, 0x3f800000")

    def prep(B, tmp, NT, sq):
        for i0 in range(0, 16, 4):
            idx = range(i0, i0 + 4)
            T = lambda i: tmp + 2 * (i % NT)
            for i in idx: a(f"v_lshlrev_b32 v{T(i)}, 16, v{B+i}")
            for i in idx: a(f"v_and_b32 v{T(i)+1}, s{s_mask}, v{B+i}")
            for i in idx: a(f"v_pk_mul_f32 {vr(T(i),2)}, {vr(T(i),2)}, {sr(s_scale,2)}")
            for i in idx: a(f"v_cvt_pk_bf16_f32 v{B+i}, v{T(i)}, v{T(i)+1}")
            for i in idx:
                if i == 0: a(f"v_dot2_f32_bf16 v{sq}, v{B+i}, v{B+i}, 0")
                else: a(f"v_dot2c_f32_bf16 v{sq}, v{B+i}, v{B+i}")

    def expstages(X0, npairs, nsq, c3):
        for p in range(npairs): a(f"v_cvt_pk_bf16_f32 v{X0(p)}, v{X0(p)}, v{X0(p)+1}")
        if npairs < 4: a("s_nop 1")
        for p in range(npairs): a(f"v_dot2_f32_bf16 v{X0(p)+1}, v{X0(p)}, s{s_sel1}, v{nsq}")
        for p in range(npairs): a(f"v_dot2_f32_bf16 v{X0(p)}, v{X0(p)}, s{s_sel0}, v{nsq}")
        if npairs < 4: a("s_nop 3")
        for p in range(npairs): a(f"v_cvt_pk_bf16_f32 v{X0(p)}, v{X0(p)}, v{X0(p)+1}")
        for p in range(npairs):
            a(f"v_and_b32 v{X0(p)+1}, s{s_mask}, v{X0(p)}")
            a(f"v_lshlrev_b32 v{X0(p)}, 16, v{X0(p)}")
        for p in range(npairs): a(f"v_pk_fma_f32 {vr(X0(p),2)}, {vr(X0(p),2)}, {sr(s_log2e,2)}, {vr(c3,2)}")
        for p in range(npairs):
            a(f"v_exp_f32 v{X0(p)}, v{X0(p)}")
            a(f"v_exp_f32 v{X0(p)+1}, v{X0(p)+1}")

    a.label(NAME)
    a("s_cmp_ge_u32 s2, 256")
    a("s_cbranch_scc1 L_end")
    stamp(0)
    a(f"s_load_dwordx2 {sr(S_OM,2)}, s[0:1], 24")
    a(f"s_load_dwordx2 {sr(S_K,2)}, s[0:1], 8")
    a(f"s_load_dwordx2 {sr(S_Q,2)}, s[0:1], 0")
    a(f"s_load_dwordx2 {sr(S_V,2)}, s[0:1], 16")
    a(f"s_load_dwordx2 {sr(S_OUT,2)}, s[0:1], 32")
    a(f"s_load_dwordx2 {sr(S_DBG,2)}, s[0:1], 40")
    a(f"s_load_dwordx2 {sr(S_WS,2)}, s[0:1], 48")
    a(f"v_lshrrev_b32 v{v_t}, 6, v0")
    a(f"v_and_b32 v{v_lane}, 63, v0")
    a(f"v_readfirstlane_b32 s{s_wave}, v{v_t}")
    for s, n in ((S_K, 0x2000000), (S_V, 0x2000000), (S_OM, 16384), (S_Q, 8192), (S_OUT, 8192), (S_DBG, 256), (S_WS, 0x800000)):
        a(f"s_mov_b32 s{s+2}, 0x{n:x}")
        a(f"s_mov_b32 s{s+3}, 0x00020000")
    if MAP == "hc":
        a(f"s_and_b32 s{s_head}, s2, 31")
        a(f"s_lshr_b32 s{s_chunk}, s2, 5")
    elif MAP == "hc2":
        a(f"s_and_b32 s{s_head}, s2, 7")
        a(f"s_lshl_b32 s{s_head}, s{s_head}, 2")
        a(f"s_lshr_b32 s{s_t0}, s2, 3")
        a(f"s_and_b32 s{s_t0}, s{s_t0}, 3")
        a(f"s_add_u32 s{s_head}, s{s_head}, s{s_t0}")
        a(f"s_lshr_b32 s{s_chunk}, s2, 5")
    else:
        a(f"s_lshr_b32 s{s_head}, s2, 3")
        a(f"s_and_b32 s{s_chunk}, s2, 7")
    a(f"v_and_b32 v{v_n}, 15, v0")
    a(f"v_lshrrev_b32 v{v_g}, 4, v{v_lane}")
    a(f"s_lshl_b32 s{s_koff}, s{s_head}, 20")
    a(f"s_lshl_b32 s{s_t0}, s{s_chunk}, 17")
    a(f"s_add_u32 s{s_koff}, s{s_koff}, s{s_t0}")
    a(f"s_lshl_b32 s{s_qoff}, s{s_head}, 8")
    a(f"s_mov_b32 s{s_mask}, 0xffff0000")
    a(f"v_xor_b32 v{v_u}, v{v_n}, v{v_g}")
    a(f"v_lshlrev_b32 v{v_u}, 4, v{v_u}")
    a(f"s_cmp_ge_u32 s{s_wave}, 8")
    a("s_cbranch_scc1 L_vwave")

    v_dma = 6; v_a = 10; v_om0, v_om1 = 14, 15
    v_nsq, v_sq = 16, 17
    v_X, v_X2 = 18, 19
    v_c3 = 20; v_c0 = 24; v_D = 28
    v_A = 32; v_B = 96; v_acc = 112; v_pq = 128; v_P = 136; v_tmp = 144; NT = 12
    a(f"v_lshl_add_u32 v{v_dma}, v{v_g}, 8, v{v_u}")
    for jj in range(1, 4):
        a(f"v_xor_b32 v{v_dma+jj}, {64*jj}, v{v_dma}")
    a(f"s_lshl_b32 s{s_t0}, s{s_wave}, 14")
    a(f"s_add_u32 s{s_knext}, s{s_koff}, s{s_t0}")
    a(f"s_add_u32 s{s_kl}, s{s_t0}, {LDS_K}")
    a(f"s_mov_b32 s{s_lnext}, s{s_kl}")
    a(f"s_lshl_b32 s{s_t0}, s{s_wave}, 12")
    a(f"s_mov_b32 m0, s{s_t0}")
    if PRIO: a(f"s_setprio {PRIO}")
    def ktile():
        a(f"s_mov_b32 m0, s{s_lnext}")
        a(f"s_add_u32 s{s_lnext}, s{s_lnext}, 4096")
        for jj in range(4):
            a(f"buffer_load_dwordx4 v{v_dma+jj}, {sr(S_K,4)}, s{s_knext} offen offset:{1024*jj} {POLK} lds")
        a(f"s_add_u32 s{s_knext}, s{s_knext}, 4096")
    a("s_waitcnt lgkmcnt(0)")
    stamp(1)
    a(f"s_cmp_ge_u32 s{s_wave}, 4")
    a("s_cbranch_scc1 L_k_noom")
    for jj in range(4):
        a(f"buffer_load_dwordx4 v{v_dma+jj}, {sr(S_OM,4)}, s{s_t0} offen offset:{1024*jj} lds")
    a(f"s_cmp_lg_u32 s{s_wave}, 0")
    a("s_cbranch_scc1 L_k_noom")
    a(f"s_mov_b32 m0, {LDS_Q}")
    a(f"v_lshlrev_b32 v{v_t}, 4, v{v_lane}")
    a(f"buffer_load_dwordx4 v{v_t}, {sr(S_Q,4)}, s{s_qoff} offen lds")
    a.label("L_k_noom")
    for T in range(AHEAD): ktile()
    stamp(2)
    a(f"v_lshl_add_u32 v{v_a}, v{v_n}, 8, v{v_u}")
    for t in range(1, 4):
        a(f"v_xor_b32 v{v_a+t}, {64*t}, v{v_a}")
    consts()
    a(f"v_mov_b32 v{v_c3}, 0x{f32bits(-3.0):08x}")
    a(f"v_mov_b32 v{v_c3+1}, 0x{f32bits(-3.0):08x}")
    a(f"s_mov_b32 s{s_it}, 0")
    a(f"s_mov_b64 {sr(s_rowm,2)}, 0xffff")
    a(f"v_mov_b32 v{v_X}, 0")
    a(f"s_waitcnt vmcnt({4*AHEAD})")
    a("s_barrier")
    stamp(3)
    for mt in range(4):
        for t in range(4):
            a(f"ds_read_b128 {vr(v_A+16*mt+4*t,4)}, v{v_a+t} offset:{LDS_OM+4096*mt}")
    for t in range(4):
        a(f"v_add_u32 v{v_a+t}, s{s_kl}, v{v_a+t}")
    if REST:
        for T in range(4 - AHEAD): ktile()
    a.label("L_tile")
    if REST:
        a(f"s_cmp_ge_u32 s{s_it}, 2")
        a("s_cbranch_scc1 L_w23")
        a(f"s_cmp_eq_u32 s{s_it}, 1")
        a("s_cbranch_scc1 L_w1")
        a("s_waitcnt vmcnt(12)")
        a("s_branch L_go")
        a.label("L_w1")
        a("s_waitcnt vmcnt(8)")
        a("s_branch L_go")
        a.label("L_w23")
        a(f"s_cmp_eq_u32 s{s_it}, 3")
        a("s_cbranch_scc1 L_w0")
        a("s_waitcnt vmcnt(4)")
        a("s_branch L_go")
        a.label("L_w0")
        a("s_waitcnt vmcnt(0)")
        a.label("L_go")
    elif AHEAD == 2:
        a(f"s_cmp_eq_u32 s{s_it}, 3")
        a("s_cbranch_scc1 L_w0")
        a("s_waitcnt vmcnt(4)")
        a("s_branch L_go")
        a.label("L_w0")
        a("s_waitcnt vmcnt(0)")
        a.label("L_go")
    elif AHEAD == 3:
        a(f"s_cmp_ge_u32 s{s_it}, 2")
        a("s_cbranch_scc1 L_w23")
        a("s_waitcnt vmcnt(8)")
        a("s_branch L_go")
        a.label("L_w23")
        a(f"s_cmp_eq_u32 s{s_it}, 3")
        a("s_cbranch_scc1 L_w0")
        a("s_waitcnt vmcnt(4)")
        a("s_branch L_go")
        a.label("L_w0")
        a("s_waitcnt vmcnt(0)")
        a.label("L_go")
    for t in range(4):
        a(f"ds_read_b128 {vr(v_B+4*t,4)}, v{v_a+t}")
    for t in range(4):
        a(f"v_add_u32 v{v_a+t}, 4096, v{v_a+t}")
    if not REST:
        a(f"s_cmp_ge_u32 s{s_it}, {4-AHEAD}")
        a("s_cbranch_scc1 L_noissue")
        ktile()
        a.label("L_noissue")
    a("s_waitcnt lgkmcnt(0)")
    prep(v_B, v_tmp, NT, v_sq)
    def mf(t, mt):
        c = "0" if t == 0 else vr(v_acc+4*mt, 4)
        a(f"v_mfma_f32_16x16x32_bf16 {vr(v_acc+4*mt,4)}, {vr(v_A+16*mt+4*t,4)}, {vr(v_B+4*t,4)}, {c}")
    for mt in range(4): mf(0, mt)
    a(f"v_mov_b32 v{v_t}, v{v_sq}")
    mf(1, 0); mf(1, 1)
    a(f"v_permlane32_swap_b32 v{v_sq}, v{v_t}")
    mf(1, 2)
    a(f"v_add_f32 v{v_sq}, v{v_sq}, v{v_t}")
    mf(1, 3)
    a(f"v_mov_b32 v{v_t}, v{v_sq}")
    mf(2, 0); mf(2, 1)
    a(f"v_permlane16_swap_b32 v{v_sq}, v{v_t}")
    mf(2, 2)
    a(f"v_add_f32 v{v_sq}, v{v_sq}, v{v_t}")
    mf(2, 3)
    a(f"v_cvt_pk_bf16_f32 v{v_sq}, v{v_sq}, v{v_sq}")
    mf(3, 0)
    a(f"v_and_b32 v{v_sq}, s{s_mask}, v{v_sq}")
    mf(3, 1)
    a(f"v_mul_f32 v{v_nsq}, -0.5, v{v_sq}")
    mf(3, 2); mf(3, 3)
    a("s_nop 4")
    X0 = lambda p: v_acc + 2 * p
    expstages(X0, 8, v_nsq, v_c3)
    for p in range(8): a(f"v_cvt_pk_bf16_f32 v{v_P+p}, v{X0(p)}, v{X0(p)+1}")
    a(f"s_cmp_lg_u32 s{s_it}, 0")
    a("s_cbranch_scc1 L_havepq")
    a(f"v_mov_b32 v{v_tmp}, {LDS_FLAG}")
    a.label("L_pqwait")
    a(f"ds_read_b32 v{v_tmp+1}, v{v_tmp}")
    a("s_waitcnt lgkmcnt(0)")
    a(f"v_readfirstlane_b32 s{s_t0}, v{v_tmp+1}")
    a("s_nop 3")
    a(f"s_cmp_lt_u32 s{s_t0}, 4")
    a("s_cbranch_scc1 L_pqwait")
    a(f"v_lshlrev_b32 v{v_tmp}, 5, v{v_g}")
    a(f"v_add_u32 v{v_tmp}, {LDS_PQ}, v{v_tmp}")
    a(f"ds_read_b128 {vr(v_pq,4)}, v{v_tmp}")
    a(f"ds_read_b128 {vr(v_pq+4,4)}, v{v_tmp} offset:16")
    for i in range(4): a(f"v_mov_b32 v{v_tmp+4+i}, 0x3f803f80")
    a(f"v_mov_b32 v{v_tmp}, 0x{f32bits(1e-6):08x}")
    a("s_waitcnt lgkmcnt(0)")
    a(f"v_mfma_f32_16x16x32_bf16 {vr(v_D,4)}, {vr(v_pq,4)}, {vr(v_tmp+4,4)}, 0")
    a(f"v_mfma_f32_16x16x32_bf16 {vr(v_D,4)}, {vr(v_pq+4,4)}, {vr(v_tmp+4,4)}, {vr(v_D,4)}")
    a("s_nop 7")
    for i in range(4): a(f"v_mul_f32 v{v_c0+i}, v{v_tmp}, v{v_D+i}")
    stamp(4)
    a("s_nop 1")
    a.label("L_havepq")
    a(f"v_mfma_f32_16x16x32_bf16 {vr(v_D,4)}, {vr(v_pq,4)}, {vr(v_P,4)}, {vr(v_c0,4)}")
    a(f"v_mfma_f32_16x16x32_bf16 {vr(v_D,4)}, {vr(v_pq+4,4)}, {vr(v_P+4,4)}, {vr(v_D,4)}")
    a(f"s_add_u32 s{s_it}, s{s_it}, 1")
    a("s_nop 6")
    a(f"v_cndmask_b32 v{v_X}, v{v_X}, v{v_D}, {sr(s_rowm,2)}")
    a(f"s_lshl_b64 {sr(s_rowm,2)}, {sr(s_rowm,2)}, 16")
    a(f"s_cmp_lt_u32 s{s_it}, 4")
    a("s_cbranch_scc1 L_tile")
    stamp(5)
    a(f"v_cvt_pk_bf16_f32 v{v_t}, v{v_X}, v{v_X}")
    a(f"s_lshl_b32 s{s_t0}, s{s_wave}, 8")
    a(f"v_and_b32 v{v_t}, s{s_mask}, v{v_t}")
    a(f"s_add_u32 s{s_t0}, s{s_t0}, {LDS_X}")
    a(f"v_sub_f32 v{v_X2}, v{v_X}, v{v_t}")
    a(f"v_lshlrev_b32 v{v_tmp}, 2, v{v_lane}")
    a(f"v_cvt_pk_bf16_f32 v{v_X2}, v{v_X2}, v{v_t}")
    a(f"v_add_u32 v{v_tmp}, s{s_t0}, v{v_tmp}")
    a(f"ds_write_b32 v{v_tmp}, v{v_X2}")
    d = v_tmp + 2
    a(f"v_add_f32_dpp v{d}, v{v_X}, v{v_X} quad_perm:[1,0,3,2] row_mask:0xf bank_mask:0xf")
    a("s_nop 1")
    a(f"v_add_f32_dpp v{d}, v{d}, v{d} quad_perm:[2,3,0,1] row_mask:0xf bank_mask:0xf")
    a("s_nop 1")
    a(f"v_add_f32_dpp v{d}, v{d}, v{d} row_half_mirror row_mask:0xf bank_mask:0xf")
    a("s_nop 1")
    a(f"v_add_f32_dpp v{d}, v{d}, v{d} row_mirror row_mask:0xf bank_mask:0xf")
    a(f"v_mov_b32 v{d+1}, v{d}")
    a("s_nop 1")
    a(f"v_permlane32_swap_b32 v{d}, v{d+1}")
    a("s_nop 0")
    a(f"v_add_f32 v{d}, v{d}, v{d+1}")
    a(f"v_mov_b32 v{d+1}, v{d}")
    a("s_nop 1")
    a(f"v_permlane16_swap_b32 v{d}, v{d+1}")
    a("s_nop 0")
    a(f"v_add_f32 v{d}, v{d}, v{d+1}")
    a(f"s_lshl_b32 s{s_t0}, s{s_wave}, 2")
    a(f"s_add_u32 s{s_t0}, s{s_t0}, {LDS_DEN}")
    a(f"v_mov_b32 v{d+1}, s{s_t0}")
    a("s_mov_b64 exec, 1")
    a(f"ds_write_b32 v{d+1}, v{d}")
    a("s_mov_b64 exec, -1")
    a("s_waitcnt lgkmcnt(0)")
    a("s_barrier")
    stamp(6)
    a(f"v_mov_b32 v{d}, {LDS_NON}")
    a(f"v_mov_b32 v{d+1}, {LDS_DEN}")
    a(f"ds_read_b64 {vr(d+2,2)}, v{d}")
    a(f"ds_read_b128 {vr(32,4)}, v{d+1}")
    a(f"ds_read_b128 {vr(36,4)}, v{d+1} offset:16")
    a(f"s_cmp_eq_u32 s{s_chunk}, {CONS}")
    a("s_cbranch_scc1 L_k_cons")
    a(f"s_cmp_lg_u32 s{s_wave}, 0")
    a("s_cbranch_scc1 L_k_exit")
    a(f"s_lshl_b32 s{s_t0}, s{s_head}, 7")
    a(f"s_lshl_b32 s{s_t1}, s{s_chunk}, 4")
    a(f"s_add_u32 s{s_t0}, s{s_t0}, s{s_t1}")
    a(f"s_add_u32 s{s_t0}, s{s_t0}, {WS_DEN}")
    a(f"v_mov_b32 v{v_t}, 0")
    a("s_waitcnt lgkmcnt(0)")
    for i in range(1, 8): a(f"v_add_f32 v32, v32, v{32+i}")
    a(f"v_mov_b32 v33, 0")
    a(f"v_mov_b32 v34, v{d+2}")
    a(f"v_mov_b32 v35, v{d+3}")
    a("s_mov_b64 exec, 1")
    if DUAL: a(f"buffer_store_dwordx4 v[32:35], v{v_t}, {sr(S_WS,4)}, s{s_t0} offen offset:0")
    a(f"s_add_u32 s{s_t0}, s{s_t0}, {WS_B}")
    a(f"buffer_store_dwordx4 v[32:35], v{v_t}, {sr(S_WS,4)}, s{s_t0} offen sc1")
    a("s_mov_b64 exec, -1")
    a.label("L_k_exit")
    dump_stamps(7)
    a("s_endpgm")
    a.label("L_k_cons")
    a("s_waitcnt lgkmcnt(0)")
    a(f"v_readfirstlane_b32 s{s_non}, v{d+2}")
    a(f"v_readfirstlane_b32 s{s_non+1}, v{d+3}")
    a(f"s_cmp_eq_u32 s{s_wave}, 7")
    a("s_cbranch_scc1 L_k_den")
    a(f"s_cmp_ge_u32 s{s_wave}, {CONS}")
    a(f"s_cselect_b32 s{s_t0}, 1, 0")
    a(f"s_add_u32 s{s_t0}, s{s_t0}, s{s_wave}")
    a(f"s_lshl_b32 s{s_t0}, s{s_t0}, 10")
    a(f"s_lshl_b32 s{s_wsoff}, s{s_head}, 13")
    a(f"s_add_u32 s{s_wsoff}, s{s_wsoff}, s{s_t0}")
    a(f"s_add_u32 s{s_t1}, s{s_wsoff}, {WS_B}")
    a(f"v_lshlrev_b32 v{v_t}, 4, v{v_lane}")
    a(f"s_lshl_b32 s{s_t0}, s{s_wave}, 9")
    a(f"s_add_u32 s{s_t0}, s{s_t0}, {LDS_G}")
    a(f"v_lshlrev_b32 v{d}, 3, v{v_lane}")
    a(f"v_add_u32 v{d}, s{s_t0}, v{d}")
    if PIPE:
        NP = PIPE
        RG = lambda i: 40 + 4 * (i % NP)
        def gl(i): a(f"buffer_load_dwordx4 v[{RG(i)}:{RG(i)+3}], v{v_t}, {sr(S_WS,4)}, s{s_t1} offen sc1")
        for i in range(NP - 1):
            gl(i)
            a(f"s_sleep {PSLEEP}")
        a.label("L_gloop")
        for i in range(NP):
            gl(i + NP - 1)
            a(f"s_waitcnt vmcnt({NP-1})")
            r = RG(i)
            a(f"v_xor_b32 v60, s{s_non}, v{r+2}")
            a(f"v_xor_b32 v61, s{s_non+1}, v{r+3}")
            a("v_or_b32 v60, v60, v61")
            a("v_cmp_ne_u32 vcc, 0, v60")
            a("s_nop 4")
            a(f"s_cbranch_vccz L_gok{i}")
        a("s_branch L_gloop")
        for i in range(NP):
            a.label(f"L_gok{i}")
            a(f"ds_write_b64 v{d}, v[{RG(i)}:{RG(i)+1}]")
            a("s_branch L_k_fin")
    else:
        a.label("L_gloop")
        if DUAL: a(f"buffer_load_dwordx4 v[40:43], v{v_t}, {sr(S_WS,4)}, s{s_wsoff} offen sc1")
        a(f"buffer_load_dwordx4 v[44:47], v{v_t}, {sr(S_WS,4)}, s{s_t1} offen sc1")
        if DUAL:
            a("s_waitcnt vmcnt(1)")
            a(f"v_xor_b32 v48, s{s_non}, v42")
            a(f"v_xor_b32 v49, s{s_non+1}, v43")
            a("v_or_b32 v48, v48, v49")
            a("v_cmp_ne_u32 vcc, 0, v48")
            a("s_nop 4")
            a("s_cbranch_vccz L_gokA")
        a("s_waitcnt vmcnt(0)")
        a(f"v_xor_b32 v48, s{s_non}, v46")
        a(f"v_xor_b32 v49, s{s_non+1}, v47")
        a("v_or_b32 v48, v48, v49")
        a("v_cmp_ne_u32 vcc, 0, v48")
        a("s_nop 4")
        if SLEEP:
            a("s_cbranch_vccz L_gokB")
            a(f"s_sleep {SLEEP}")
            a("s_branch L_gloop")
            a.label("L_gokB")
        else:
            a("s_cbranch_vccnz L_gloop")
        a(f"ds_write_b64 v{d}, v[44:45]")
        a("s_branch L_k_fin")
        if DUAL:
            a.label("L_gokA")
            a(f"ds_write_b64 v{d}, v[40:41]")
            a("s_branch L_k_fin")
    a.label("L_k_den")
    for i in range(1, 8): a(f"v_add_f32 v32, v32, v{32+i}")
    a(f"v_and_b32 v{d}, 7, v{v_lane}")
    a(f"v_lshlrev_b32 v{v_t}, 4, v{d}")
    a(f"s_lshl_b32 s{s_wsoff}, s{s_head}, 7")
    a(f"s_add_u32 s{s_wsoff}, s{s_wsoff}, {WS_DEN}")
    a(f"s_add_u32 s{s_t1}, s{s_wsoff}, {WS_B}")
    a(f"v_cmp_eq_u32 {sr(s_cmp,2)}, {CONS}, v{d}")
    a.label("L_dloop")
    if DUAL: a(f"buffer_load_dwordx4 v[40:43], v{v_t}, {sr(S_WS,4)}, s{s_wsoff} offen sc1")
    a(f"buffer_load_dwordx4 v[44:47], v{v_t}, {sr(S_WS,4)}, s{s_t1} offen sc1")
    a("s_waitcnt vmcnt(0)")
    a(f"v_xor_b32 v48, s{s_non}, v46")
    a(f"v_xor_b32 v49, s{s_non+1}, v47")
    a("v_or_b32 v48, v48, v49")
    a("v_cmp_eq_u32 vcc, 0, v48")
    if DUAL:
        a(f"v_xor_b32 v50, s{s_non}, v42")
        a(f"v_xor_b32 v51, s{s_non+1}, v43")
        a("v_or_b32 v50, v50, v51")
        a(f"v_cmp_eq_u32 {sr(s_exec,2)}, 0, v50")
        a("s_nop 1")
        a(f"v_cndmask_b32 v44, v44, v40, {sr(s_exec,2)}")
        a(f"s_or_b64 vcc, vcc, {sr(s_exec,2)}")
    a("s_nop 1")
    a(f"s_or_b64 vcc, vcc, {sr(s_cmp,2)}")
    a("s_cmp_eq_u64 vcc, -1")
    if SLEEP:
        a("s_cbranch_scc1 L_dok")
        a(f"s_sleep {SLEEP}")
        a("s_branch L_dloop")
        a.label("L_dok")
    else:
        a("s_cbranch_scc0 L_dloop")
    a(f"v_cndmask_b32 v44, v44, v32, {sr(s_cmp,2)}")
    a("s_nop 1")
    a("v_add_f32_dpp v44, v44, v44 quad_perm:[1,0,3,2] row_mask:0xf bank_mask:0xf")
    a("s_nop 1")
    a("v_add_f32_dpp v44, v44, v44 quad_perm:[2,3,0,1] row_mask:0xf bank_mask:0xf")
    a("s_nop 1")
    a("v_add_f32_dpp v44, v44, v44 row_half_mirror row_mask:0xf bank_mask:0xf")
    a(f"v_cvt_pk_bf16_f32 v44, v44, v44")
    a(f"v_and_b32 v44, s{s_mask}, v44")
    a(f"v_add_f32 v44, 0x{f32bits(1e-6):08x}, v44")
    a(f"v_cvt_pk_bf16_f32 v44, v44, v44")
    a(f"v_and_b32 v44, s{s_mask}, v44")
    a(f"v_rcp_f32 v44, v44")
    a(f"v_mov_b32 v45, {LDS_RDEN}")
    a("s_mov_b64 exec, 1")
    a("ds_write_b32 v45, v44")
    a("s_mov_b64 exec, -1")
    a.label("L_k_fin")
    a("s_waitcnt lgkmcnt(0)")
    a("s_barrier")
    dump_stamps(7)
    a("s_endpgm")

    a.label("L_vwave")
    v_vo = 6; v_sel = 8; v_xa = 12; v_wb = 14; v_VA = 16; v_VD = 24; v_non = 28
    v_V = 32; v_r = 160
    QB = v_V + 4 * EARLY
    qA, qB, qacc, qtmp, qnsq, qsq, qc3 = QB, QB + 16, QB + 32, QB + 40, QB + 64, QB + 65, QB + 66
    a(f"s_sub_u32 s{s_wave}, s{s_wave}, 8")
    a(f"s_lshl_b32 s{s_t0}, s{s_wave}, 15")
    a(f"s_add_u32 s{s_koff}, s{s_koff}, s{s_t0}")
    a(f"v_lshlrev_b32 v{v_vo}, 4, v{v_lane}")
    a(f"v_lshlrev_b32 v{v_t}, 4, v{v_g}")
    a(f"v_mov_b32 v{v_r}, {LDS_FLAG}")
    a(f"v_mov_b32 v{v_r+1}, 0")
    a(f"ds_write_b32 v{v_r}, v{v_r+1}")
    a(f"s_lshl_b32 s{s_t0}, s{s_wave}, 12")
    a(f"v_lshl_add_u32 v{v_r+4}, v{v_n}, 8, v{v_u}")
    a(f"v_add_u32 v{v_r+4}, s{s_t0}, v{v_r+4}")
    for t in range(1, 4):
        a(f"v_xor_b32 v{v_r+4+t}, {64*t}, v{v_r+4}")
    consts()
    a(f"v_mov_b32 v{qc3}, 0x{f32bits(-3.0):08x}")
    a(f"v_mov_b32 v{qc3+1}, 0x{f32bits(-3.0):08x}")
    a("s_waitcnt lgkmcnt(0)")
    stamp(1)
    a(f"v_add_u32 v{v_t}, {LDS_Q}, v{v_t}")
    def vload(j):
        if j % 4 == 0: a(f"s_add_u32 s{s_t1}, s{s_koff}, {4096*(j//4)}")
        a(f"buffer_load_dwordx4 {vr(v_V+4*j,4)}, v{v_vo}, {sr(S_V,4)}, s{s_t1} offen offset:{1024*(j%4)} {POLV}")
    for j in range(EARLY): vload(j)
    a("s_barrier")
    if VPRIO: a(f"s_setprio {VPRIO}")
    for t in range(4):
        a(f"ds_read_b128 {vr(qB+4*t,4)}, v{v_t} offset:{64*t}")
    for t in range(4):
        a(f"ds_read_b128 {vr(qA+4*t,4)}, v{v_r+4+t} offset:{LDS_OM}")
    a("s_waitcnt lgkmcnt(4)")
    prep(qB, qtmp, 12, qsq)
    a("s_waitcnt lgkmcnt(0)")
    for t in range(4):
        c = "0" if t == 0 else vr(qacc, 4)
        a(f"v_mfma_f32_16x16x32_bf16 {vr(qacc,4)}, {vr(qA+4*t,4)}, {vr(qB+4*t,4)}, {c}")
    a(f"v_mov_b32 v{v_t}, v{qsq}")
    a("s_nop 1")
    a(f"v_permlane32_swap_b32 v{qsq}, v{v_t}")
    a("s_nop 0")
    a(f"v_add_f32 v{qsq}, v{qsq}, v{v_t}")
    a(f"v_mov_b32 v{v_t}, v{qsq}")
    a("s_nop 1")
    a(f"v_permlane16_swap_b32 v{qsq}, v{v_t}")
    a("s_nop 0")
    a(f"v_add_f32 v{qsq}, v{qsq}, v{v_t}")
    a(f"v_cvt_pk_bf16_f32 v{qsq}, v{qsq}, v{qsq}")
    a(f"v_and_b32 v{qsq}, s{s_mask}, v{qsq}")
    a(f"v_mul_f32 v{qnsq}, -0.5, v{qsq}")
    a("s_nop 1")
    QX = lambda p: qacc + 2 * p
    expstages(QX, 2, qnsq, qc3)
    a(f"v_mov_b32 v{qtmp}, 0x{f32bits(1e-6):08x}")
    a(f"v_mov_b32 v{qtmp+1}, 0x{f32bits(1e-6):08x}")
    for p in range(2): a(f"v_pk_add_f32 {vr(QX(p),2)}, {vr(QX(p),2)}, {vr(qtmp,2)}")
    for p in range(2): a(f"v_cvt_pk_bf16_f32 v{qtmp+2+p}, v{QX(p)}, v{QX(p)+1}")
    a(f"s_lshl_b32 s{s_t0}, s{s_wave}, 3")
    a(f"s_add_u32 s{s_t0}, s{s_t0}, {LDS_PQ}")
    a(f"v_lshlrev_b32 v{v_t}, 5, v{v_g}")
    a(f"v_add_u32 v{v_t}, s{s_t0}, v{v_t}")
    a(f"v_mov_b32 v{v_r+1}, 1")
    a(f"s_mov_b32 s{s_exec}, 0x00010001")
    a(f"s_mov_b32 s{s_exec+1}, 0x00010001")
    a(f"s_mov_b64 exec, {sr(s_exec,2)}")
    a(f"ds_write_b64 v{v_t}, {vr(qtmp+2,2)}")
    a("s_mov_b64 exec, 1")
    a(f"ds_add_u32 v{v_r}, v{v_r+1}")
    a(f"s_cmp_lg_u32 s{s_wave}, 0")
    a("s_cbranch_scc1 L_v_nononce")
    a(f"s_memrealtime {sr(s_non,2)}")
    a(f"v_mov_b32 v{v_non+2}, 0")
    a(f"v_mov_b32 v{v_non+3}, 0")
    a(f"s_lshl_b32 s{s_t0}, s{s_head}, 3")
    a(f"v_mov_b32 v{v_t}, s{s_t0}")
    a("s_waitcnt lgkmcnt(0)")
    a(f"s_or_b32 s{s_non}, s{s_non}, 1")
    a(f"v_mov_b32 v{v_non}, s{s_non}")
    a(f"v_mov_b32 v{v_non+1}, s{s_non+1}")
    a(f"buffer_atomic_cmpswap_x2 {vr(v_non,4)}, v{v_t}, {sr(S_DBG,4)}, 0 offen sc0")
    a.label("L_v_nononce")
    a("s_mov_b64 exec, -1")
    if VPRIO: a("s_setprio 0")
    stamp(2)
    for j in range(EARLY, 32): vload(j)
    stamp(3)
    t0, t1, t2 = v_r, v_r + 1, v_r + 2
    a(f"v_mov_b32 v{t0}, 0x0302")
    a(f"v_mov_b32 v{t1}, 0x0100")
    a(f"v_cmp_gt_u32 vcc, 8, v{v_n}")
    a("s_nop 1")
    a(f"v_cndmask_b32 v{t0}, v{t1}, v{t0}, vcc")
    a(f"v_lshlrev_b32 v{t1}, 16, v{t0}")
    a(f"v_or_b32 v{t1}, 0x0c0c, v{t1}")
    a(f"v_or_b32 v{t0}, 0x0c0c0000, v{t0}")
    a(f"v_and_b32 v{t2}, 1, v{v_n}")
    a(f"v_cmp_eq_u32 vcc, 1, v{t2}")
    a("s_nop 1")
    a(f"v_cndmask_b32 v{t0}, v{t0}, v{t1}, vcc")
    a(f"v_bfe_u32 v{t2}, v{v_n}, 1, 2")
    a(f"v_mov_b32 v{t1}, 0x0c0c0c0c")
    for k in range(4):
        a(f"v_cmp_eq_u32 vcc, {k}, v{t2}")
        a("s_nop 1")
        a(f"v_cndmask_b32 v{v_sel+k}, v{t1}, v{t0}, vcc")
    a(f"s_lshl_b32 s{s_t0}, s{s_wave}, 9")
    a(f"s_add_u32 s{s_t0}, s{s_t0}, {LDS_X}")
    a(f"v_lshl_add_u32 v{t2}, v{v_n}, 2, v{v_g}")
    a(f"v_lshlrev_b32 v{t2}, 2, v{t2}")
    a(f"v_add_u32 v{t2}, s{s_t0}, v{t2}")
    a(f"s_lshl_b32 s{s_t0}, s{s_wave}, 9")
    a(f"s_add_u32 s{s_t0}, s{s_t0}, {LDS_RED}")
    a(f"v_lshlrev_b32 v{v_t}, 3, v{v_lane}")
    a(f"v_add_u32 v{v_t}, s{s_t0}, v{v_t}")
    a(f"s_cmp_lg_u32 s{s_wave}, 0")
    a("s_cbranch_scc1 L_v_b2")
    a(f"s_waitcnt vmcnt({32-EARLY})")
    a(f"v_readfirstlane_b32 s{s_t0}, v{v_non}")
    a(f"v_readfirstlane_b32 s{s_t1}, v{v_non+1}")
    a("s_nop 3")
    a(f"s_or_b32 s{s_cmp}, s{s_t0}, s{s_t1}")
    a(f"s_cmp_eq_u32 s{s_cmp}, 0")
    a(f"s_cselect_b32 s{s_non}, s{s_non}, s{s_t0}")
    a(f"s_cselect_b32 s{s_non+1}, s{s_non+1}, s{s_t1}")
    a(f"v_mov_b32 v{t0}, {LDS_NON}")
    a(f"v_mov_b32 v{v_non}, s{s_non}")
    a(f"v_mov_b32 v{v_non+1}, s{s_non+1}")
    a(f"ds_write_b64 v{t0}, {vr(v_non,2)}")
    a("s_waitcnt lgkmcnt(0)")
    a.label("L_v_b2")
    a("s_barrier")
    if VP2: a(f"s_setprio {VP2}")
    stamp(4)
    a(f"ds_read_b32 v{v_xa}, v{t2}")
    a(f"ds_read_b32 v{v_xa+1}, v{t2} offset:256")
    a("s_waitcnt lgkmcnt(0)")
    def buildA(j):
        wb = v_wb + (j % 2)
        A = v_VA + 4 * (j % 2)
        a(f"v_mov_b32_dpp v{wb}, v{v_xa + j // 16} row_newbcast:{j % 16} row_mask:0xf bank_mask:0xf")
        for k in range(4):
            a(f"v_perm_b32 v{A+k}, v{wb}, v{wb}, v{v_sel+k}")
    a("s_mov_b32 s3, 0")
    a.label("L_vphase")
    buildA(0)
    for j in range(32):
        if j + 1 < 32: buildA(j + 1)
        else: a("s_nop 1")
        a(f"s_waitcnt vmcnt({31-j})")
        c = "0" if j == 0 else vr(v_VD, 4)
        a(f"v_mfma_f32_16x16x32_bf16 {vr(v_VD,4)}, {vr(v_VA+4*(j%2),4)}, {vr(v_V+4*j,4)}, {c}")
    if DRY:
        a("s_cmp_eq_u32 s3, 1")
        a("s_cbranch_scc1 L_k_dryback")
    stamp(5)
    a("s_nop 7")
    a(f"v_permlane32_swap_b32 v{v_VD}, v{v_VD+2}")
    a(f"v_permlane32_swap_b32 v{v_VD+1}, v{v_VD+3}")
    a("s_nop 0")
    a(f"v_add_f32 v{v_VD}, v{v_VD}, v{v_VD+2}")
    a(f"v_add_f32 v{v_VD+1}, v{v_VD+1}, v{v_VD+3}")
    a(f"ds_write_b64 v{v_t}, {vr(v_VD,2)}")
    a("s_waitcnt lgkmcnt(0)")
    a("s_barrier")
    a(f"s_cmp_eq_u32 s{s_wave}, 0")
    a("s_cbranch_scc1 L_final")
    if DIAG:
        a(f"s_add_u32 s{s_wave}, s{s_wave}, 8")
        dump_stamps(6)
    a("s_endpgm")
    a.label("L_final")
    R = v_V
    for u in range(1, 4):
        a(f"ds_read_b64 {vr(R+2*u,2)}, v{v_t} offset:{512*u}")
    N0, N1 = v_VD, v_VD + 1
    a(f"s_cmp_eq_u32 s{s_chunk}, {CONS}")
    a("s_cbranch_scc1 L_consumer")
    a(f"s_lshl_b32 s{s_wsoff}, s{s_head}, 13")
    a(f"v_lshlrev_b32 v{v_t}, 4, v{v_lane}")
    a(f"s_lshl_b32 s{s_t0}, s{s_chunk}, 10")
    a(f"s_add_u32 s{s_wsoff}, s{s_wsoff}, s{s_t0}")
    a(f"s_add_u32 s{s_t1}, s{s_wsoff}, {WS_B}")
    G = R + 16
    a(f"v_mov_b32 v{G+2}, s{s_non}")
    a(f"v_mov_b32 v{G+3}, s{s_non+1}")
    a("s_waitcnt lgkmcnt(0)")
    a(f"v_pk_add_f32 {vr(N0,2)}, {vr(N0,2)}, {vr(R+2,2)}")
    a(f"v_pk_add_f32 {vr(R+4,2)}, {vr(R+4,2)}, {vr(R+6,2)}")
    a(f"v_pk_add_f32 {vr(G,2)}, {vr(N0,2)}, {vr(R+4,2)}")
    if DUAL: a(f"buffer_store_dwordx4 {vr(G,4)}, v{v_t}, {sr(S_WS,4)}, s{s_wsoff} offen")
    a(f"buffer_store_dwordx4 {vr(G,4)}, v{v_t}, {sr(S_WS,4)}, s{s_t1} offen sc1")
    if DIAG:
        stamp(6)
        a(f"s_add_u32 s{s_wave}, s{s_wave}, 8")
        dump_stamps(7)
    a("s_endpgm")
    a.label("L_consumer")
    a(f"v_lshlrev_b32 v{v_t}, 3, v{v_lane}")
    a(f"v_add_u32 v{v_t}, {LDS_G}, v{v_t}")
    for i in range(7):
        a(f"ds_read_b64 {vr(R+8+2*i,2)}, v{v_t} offset:{512*i}")
    a(f"v_mov_b32 v{v_r+2}, {LDS_RDEN}")
    a(f"ds_read_b32 v{v_r+3}, v{v_r+2}")
    a(f"v_and_b32 v{v_t}, 1, v{v_g}")
    a(f"v_lshlrev_b32 v{v_t}, 1, v{v_t}")
    a(f"v_lshrrev_b32 v{v_r+1}, 1, v{v_g}")
    a(f"v_add_u32 v{v_t}, v{v_t}, v{v_r+1}")
    a(f"v_lshl_add_u32 v{v_t}, v{v_n}, 2, v{v_t}")
    a(f"v_lshlrev_b32 v{v_t}, 2, v{v_t}")
    a("s_waitcnt lgkmcnt(0)")
    P = lambda i: vr(R + 2 * i, 2)
    a(f"v_pk_add_f32 {vr(N0,2)}, {vr(N0,2)}, {P(1)}")
    a(f"v_pk_add_f32 {P(2)}, {P(2)}, {P(3)}")
    a(f"v_pk_add_f32 {P(4)}, {P(4)}, {P(5)}")
    a(f"v_pk_add_f32 {P(6)}, {P(6)}, {P(7)}")
    a(f"v_pk_add_f32 {P(8)}, {P(8)}, {P(9)}")
    a(f"v_pk_add_f32 {vr(N0,2)}, {vr(N0,2)}, {P(10)}")
    a(f"v_pk_add_f32 {P(2)}, {P(2)}, {P(4)}")
    a(f"v_pk_add_f32 {P(6)}, {P(6)}, {P(8)}")
    a(f"v_pk_add_f32 {vr(N0,2)}, {vr(N0,2)}, {P(2)}")
    a(f"v_pk_add_f32 {vr(N0,2)}, {vr(N0,2)}, {P(6)}")
    a(f"v_cvt_pk_bf16_f32 v{v_r}, v{N0}, v{N1}")
    a(f"v_lshlrev_b32 v{N0}, 16, v{v_r}")
    a(f"v_and_b32 v{N1}, s{s_mask}, v{v_r}")
    a(f"v_mul_f32 v{N0}, v{N0}, v{v_r+3}")
    a(f"v_mul_f32 v{N1}, v{N1}, v{v_r+3}")
    a(f"v_cvt_pk_bf16_f32 v{v_r}, v{N0}, v{N1}")
    a(f"buffer_store_dword v{v_r}, v{v_t}, {sr(S_OUT,4)}, s{s_qoff} offen {opts.get('outpol','').replace('+',' ')}")
    if DIAG:
        stamp(6)
        a(f"s_add_u32 s{s_wave}, s{s_wave}, 8")
        dump_stamps(7)
    a.label("L_end")
    a("s_endpgm")
    return finish(a, LDS_TOTAL, NVGPR, NSGPR, 768)

if __name__ == "__main__":
    opts = {}; outp = None
    for arg in sys.argv[1:]:
        if "=" in arg:
            k, v = arg.split("=", 1)
            if v in ("0", "1") and k in ("diag",): v = bool(int(v))
            opts[k] = v
        else: outp = arg
    txt = gen(opts)
    if outp: open(outp, "w").write(txt)
    else: sys.stdout.write(txt)
```
